```python
import torch

def _softmax(x, axis=-1):
    return torch.softmax(x, dim=axis)
def _gelu(x):
    return torch.nn.functional.gelu(x, approximate="tanh")
def _silu(x):
    return torch.nn.functional.silu(x)
def _sigmoid(x):
    return torch.sigmoid(x)
def _layernorm(x, axis=-1, eps=1e-5):
    m = x.mean(dim=axis, keepdim=True)
    v = x.var(dim=axis, keepdim=True, unbiased=False)
    return (x - m) / torch.sqrt(v + eps)
def _scatter_add(tgt, idx, src, axis=0):
    return tgt.clone().index_add_(axis, idx, src)
def _segment_sum(src, seg, n):
    out = torch.zeros((n,) + src.shape[1:], dtype=src.dtype)
    return out.index_add_(0, seg, src)
def _pad(x, pw):
    flat = tuple(v for pair in reversed(pw) for v in pair)
    return torch.nn.functional.pad(x, flat)

kernel_name = 'standalone__dense_activation_squared_relu__prompt'

def setup_inputs():

    _w = (lambda a: (lambda t: t.to(torch.bfloat16) if t.is_floating_point() else t)(torch.as_tensor(a)))
    B, S, D, F = 1, 2048, 512, 1792
    return {
        "x": _w((lambda *s: torch.randn(*s, dtype=torch.bfloat16) * 0.05)(B, S, D)),
        "w1": _w((lambda *s: torch.randn(*s, dtype=torch.bfloat16) * 0.05)(D, F)),
        "b1": _w((lambda *s: torch.randn(*s, dtype=torch.bfloat16) * 0.05)(F)),
        "w2": _w((lambda *s: torch.randn(*s, dtype=torch.bfloat16) * 0.05)(F, D)),
        "b2": _w((lambda *s: torch.randn(*s, dtype=torch.bfloat16) * 0.05)(D)),
    }

def reference(x, w1, b1, w2, b2):
    h = torch.einsum("bsd,df->bsf", x, w1) + b1
    zero = torch.zeros_like(h)
    r = torch.where(h > zero, h, zero)
    h = r * r
    out = torch.einsum("bsf,fd->bsd", h, w2) + b2
    return out
```

```python
import sys, re
from asmlib import *

STAMP = 200 << 20
HOFF = 0
FOFF = 8 << 20

class E(K):
    def __init__(s, name, **kw):
        super().__init__(name, **kw)
        s.vm = []
        s.lg = []
        s.n = 0
        s.mfma_w = {}
        s.valu_w = {}
        s.st_r = {}
        s.m0_w = -10
        s.sg_valu = {}
    @staticmethod
    def regs(op):
        op = op.strip()
        m = re.fullmatch(r"([vas])\[(\d+):(\d+)\]", op)
        if m: return [(m.group(1), i) for i in range(int(m.group(2)), int(m.group(3)) + 1)]
        m = re.fullmatch(r"([vas])(\d+)", op)
        if m: return [(m.group(1), int(m.group(2)))]
        return []
    def pad(s, need):
        while need > 0:
            d = min(need, 16)
            s.lines.append(f"    s_nop {d-1}")
            s.n += d; need -= d
    def i(s, line):
        line = line.strip()
        if not line or line.startswith(";"):
            if line: s.lines.append("    " + line)
            return
        if line.endswith(":"):
            s.lines.append(line); return
        code = line.split(";")[0].strip()
        mn, _, rest = code.partition(" ")
        ops = [o.strip() for o in re.split(r",(?![^\[]*\])", rest)] if rest else []
        ops0 = [o.split(" ")[0] for o in ops]
        allr = [r for o in ops0 for r in s.regs(o)]
        need = 0
        is_mfma = mn.startswith("v_mfma")
        is_valu = mn.startswith("v_") and not is_mfma
        is_mem = mn.startswith(("buffer_", "global_", "ds_"))
        if is_mfma:
            d = s.regs(ops0[0]); srcs = [r for o in ops0[1:] for r in s.regs(o)]
            for r in srcs:
                if r in s.valu_w: need = max(need, 2 - (s.n - s.valu_w[r] - 1))
            ab = s.regs(ops0[1]) + s.regs(ops0[2])
            for r in ab:
                if r in s.mfma_w: need = max(need, 12 - (s.n - s.mfma_w[r] - 1))
            c = s.regs(ops0[3])
            if c != d:
                for r in c + d:
                    if r in s.mfma_w: need = max(need, 12 - (s.n - s.mfma_w[r] - 1))
        elif is_valu or is_mem:
            for r in allr:
                if r in s.mfma_w: need = max(need, 12 - (s.n - s.mfma_w[r] - 1))
        if is_valu:
            dst = s.regs(ops0[0]) if ops0 else []
            for r in dst:
                if r in s.st_r: need = max(need, 2 - (s.n - s.st_r[r] - 1))
            if mn.startswith(("v_readfirstlane", "v_readlane")):
                for r in s.regs(ops0[1]):
                    if r in s.valu_w: need = max(need, 1 - (s.n - s.valu_w[r] - 1))
            if mn.startswith("v_permlane"):
                for r in allr:
                    if r in s.valu_w: need = max(need, 2 - (s.n - s.valu_w[r] - 1))
            for r in allr:
                if r[0] == "s" and r in s.sg_valu: need = max(need, 2 - (s.n - s.sg_valu[r] - 1))
        if is_mem:
            for r in allr:
                if r[0] == "s" and r in s.sg_valu: need = max(need, 5 - (s.n - s.sg_valu[r] - 1))
            if code.endswith(" lds"): need = max(need, 1 - (s.n - s.m0_w - 1))
        s.pad(need)
        s.lines.append("    " + line)
        if is_mfma:
            for r in s.regs(ops0[0]): s.mfma_w[r] = s.n
        if is_valu:
            for r in (s.regs(ops0[0]) if ops0 else []):
                if r[0] == "s": s.sg_valu[r] = s.n
                else: s.valu_w[r] = s.n
            if mn.startswith("v_permlane"):
                for r in s.regs(ops0[1]): s.valu_w[r] = s.n
        if mn.startswith("buffer_store_dwordx"):
            for r in s.regs(ops0[0]): s.st_r[r] = s.n
        if mn.startswith("s_") and ops0 and ops0[0] == "m0": s.m0_w = s.n
        if mn == "s_nop": s.n += int(ops0[0]) + 1
        else: s.n += 1
    def __call__(s, text=""):
        for l in text.split("\n"): s.i(l)
    def vmem(s, tag, line):
        s.i(line); s.vm.append(tag); assert len(s.vm) <= 63, "vmcnt overflow"
    def lds(s, tag, line):
        s.i(line); s.lg.append(tag)
    def _wait(s, q, tags):
        last = max((i for i, t in enumerate(q) if t in tags), default=-1)
        return last
    def wait(s, vm=(), lg=(), force=False):
        if isinstance(vm, str): vm = (vm,)
        if isinstance(lg, str): lg = (lg,)
        parts = []
        l = s._wait(s.vm, set(vm))
        if l >= 0:
            n = len(s.vm) - 1 - l; s.vm = s.vm[l + 1:]; parts.append(f"vmcnt({n})")
        l = s._wait(s.lg, set(lg))
        if l >= 0:
            n = len(s.lg) - 1 - l
            n = min(n, 15); s.lg = s.lg[len(s.lg) - n:] if n else []; parts.append(f"lgkmcnt({n})")
        if parts: s.i("s_waitcnt " + " ".join(parts))
    def wait_all(s, vm=True, lg=True):
        p = []
        if vm: p.append("vmcnt(0)"); s.vm = []
        if lg: p.append("lgkmcnt(0)"); s.lg = []
        s.i("s_waitcnt " + " ".join(p))

def gen(name=MAIN, stamps=False, rot=0, hst="sc1", hld="sc1", ost="", DH=12, sleep=1):
    k = E(name, vgpr=512, accum=256, sgpr=102)
    nstamp = [0]
    def stamp():
        if not stamps: return
        i = nstamp[0]; nstamp[0] += 1
        k(f"s_memtime s[{72+2*i}:{73+2*i}]"); k.wait_all(vm=False)
    sX, sW1, sW2, sWS, sOUT, sDBG, sB1, sB2 = 20, 24, 28, 32, 36, 40, 44, 48
    srd = lambda b: f"s[{b}:{b+3}]"
    sWV, sIDX, sXCD, sGP, sJ, sGC, sQ, sT = 3, 4, 5, 6, 7, 8, 9, 10
    sT0, sT1, sT2 = 11, 12, 13
    sLW1, sLX, sLW2 = 14, 15, 16
    sHST, sHLD, sOW2 = 17, 18, 19
    sCW1 = 52
    sCX = 60
    sOUTO, sCNT = 68, 69
    vL, vL16 = 0, 1
    vW1d = 2
    vXd = 6
    vTr1 = 8
    vXr = 9
    vW2d = 13
    vT = 15
    vB1 = 16
    vP = 32
    vTr2 = 48
    vFst = 50
    vPoll = 51
    vE14, vE16 = 52, 53
    vRdy = 54
    vRW = 55
    vRR = 59
    vOut = 60
    vOne = 61
    vL4 = 62
    vT2 = 63
    vAcc = 64
    vF = 128
    aW2 = 0
    aX = 224
    XB = 98304
    end = f"L_end_{name}"

    k(f"s_cmp_ge_u32 s2, 256\ns_cbranch_scc1 {end}")
    if stamps: k("s_memrealtime s[70:71]")
    for b, off in ((sX, 0), (sW1, 8), (sB1, 16), (sW2, 24), (sB2, 32), (sOUT, 40), (sDBG, 48), (sWS, 56)):
        k(f"s_load_dwordx2 s[{b}:{b+1}], s[0:1], {off}")
    if stamps: k("s_memtime s[72:73]"); nstamp[0] = 1
    for b, sz in ((sX, 2048*1024), (sW1, 512*3584), (sB1, 3584), (sW2, 1792*1024), (sB2, 1024), (sOUT, 2048*1024), (sDBG, 64), (sWS, 0x10000000 if stamps else (FOFF + 16384))):
        k(f"s_mov_b32 s{b+2}, {sz}\ns_mov_b32 s{b+3}, 0x20000")
    k(f"""
    v_lshrrev_b32 v{vT}, 6, v0
    v_and_b32 v{vL}, 63, v0
    v_readfirstlane_b32 s{sWV}, v{vT}
    s_and_b32 s{sXCD}, s2, 7
    s_lshr_b32 s{sIDX}, s2, 3
    s_lshr_b32 s{sT0}, s{sXCD}, 1
    s_lshl_b32 s{sT0}, s{sT0}, 2
    s_and_b32 s{sGP}, s{sIDX}, 3
    s_add_u32 s{sGP}, s{sGP}, s{sT0}
    s_and_b32 s{sT0}, s{sXCD}, 1
    s_mul_i32 s{sT0}, s{sT0}, 7
    s_lshr_b32 s{sJ}, s{sIDX}, 2
    s_add_u32 s{sJ}, s{sJ}, s{sT0}
    s_and_b32 s{sT}, s{sIDX}, 7
    s_bfe_u32 s{sQ}, s{sIDX}, 0x10003
    s_lshr_b32 s{sGC}, s{sIDX}, 4
    s_lshl_b32 s{sT0}, s{sXCD}, 1
    s_add_u32 s{sGC}, s{sGC}, s{sT0}
    v_lshlrev_b32 v{vL16}, 4, v{vL}
    v_lshrrev_b32 v{vL4}, 4, v{vL}          ; l>>4
    """)
    k(f"""
    s_lshl_b32 s{sT0}, s{sWV}, 4
    v_add_u32 v{vT}, s{sT0}, v{vL4}          ; row = 16w + (l>>4)
    v_mul_u32_u24 v{vT}, 3584, v{vT}
    v_lshlrev_b32 v{vT2}, 2, v{vL4}
    v_xor_b32 v{vT2}, v{vT2}, v{vL}
    v_and_b32 v{vT2}, 15, v{vT2}
    v_lshl_add_u32 v{vW1d}, v{vT2}, 4, v{vT}
    v_add_u32 v{vW1d+1}, {4*3584-1024}, v{vW1d}
    v_add_u32 v{vW1d+2}, {2*(4*3584-1024)}, v{vW1d}
    v_add_u32 v{vW1d+3}, {3*(4*3584-1024)}, v{vW1d}
    v_lshrrev_b32 v{vT}, 3, v{vL}
    v_add_u32 v{vT}, s{sT0}, v{vT}
    v_lshlrev_b32 v{vT}, 10, v{vT}
    v_xor_b32 v{vT2}, v{vL4}, v{vL}
    v_and_b32 v{vT2}, 7, v{vT2}
    v_lshl_add_u32 v{vXd}, v{vT2}, 4, v{vT}
    v_xor_b32 v{vXd+1}, 64, v{vXd}
    v_add_u32 v{vXd+1}, {8*1024-1024}, v{vXd+1}
    s_lshl_b32 s{sT1}, s{sJ}, 8
    s_lshl_b32 s{sT2}, s{sGP}, 17
    s_lshl_b32 s{sLW1}, s{sWV}, 12
    s_lshl_b32 s{sLX}, s{sWV}, 11
    """)
    if rot:
        k(f"""s_lshr_b32 s{sT0}, s{sIDX}, 2
        s_xor_b32 s{sT0}, s{sT0}, s{sIDX}
        s_and_b32 s{sT0}, s{sT0}, 1
        s_lshl_b32 s{sT0}, s{sT0}, 2""")
        for c in range(8):
            k(f"""s_xor_b32 s{sCNT}, s{sT0}, {c}
            s_mul_i32 s{sCW1+c}, s{sCNT}, {64*3584}
            s_add_u32 s{sCW1+c}, s{sCW1+c}, s{sT1}
            s_lshl_b32 s{sCX+c}, s{sCNT}, 7
            s_add_u32 s{sCX+c}, s{sCX+c}, s{sT2}""")
    else:
        for c in range(8):
            k(f"s_add_u32 s{sCW1+c}, s{sT1}, {c*64*3584}\ns_add_u32 s{sCX+c}, s{sT2}, {c*128}")
    k(f"""
    s_lshl_b32 s{sT0}, s{sWV}, 6
    s_add_u32 s{sT0}, s{sT0}, s{sT1}
    v_lshrrev_b32 v{vT}, 5, v{vL}
    v_lshlrev_b32 v{vT}, 3, v{vT}
    v_add_u32 v{vP}, s{sT0}, v{vT}
    s_cmp_ge_u32 s{sIDX}, 28
    s_waitcnt lgkmcnt(0)
    s_cbranch_scc1 L_spare0
    """)
    def dma_chunk(c):
        slot = (c & 3) * 24576
        it = []
        for ii in range(4):
            pre = f"s_add_u32 m0, s{sLW1}, {slot}" if ii == 0 else None
            it.append((pre, f"a{c}", f"buffer_load_dwordx4 v{vW1d+ii}, {srd(sW1)}, s{sCW1+c} offen offset:{1024*ii} lds"))
        for ii in range(2):
            pre = f"s_add_u32 m0, s{sLX}, {slot+16384}" if ii == 0 else None
            it.append((pre, f"a{c}", f"buffer_load_dwordx4 v{vXd+ii}, {srd(sX)}, s{sCX+c} offen offset:{1024*ii} lds"))
        return it
    def dma_xb(c):
        it = []
        for ii in range(2):
            pre = f"s_add_u32 m0, s{sLX}, {XB+c*8192}" if ii == 0 else None
            it.append((pre, f"xb{c}", f"buffer_load_dwordx4 v{vW1d+ii}, {srd(sX)}, s{sCX+c} offen offset:{1024*ii} lds"))
        return it
    def w2slot(s):
        i = s % 14
        return (i // 3) * 24576 + (i % 3) * 2048 if i < 12 else None, i
    def w2_lds(s):
        i = s % 14
        if i < 12: return (sLW2, (i // 3) * 24576 + (i % 3) * 2048)
        return (sLW1, XB + (i - 12) * 2048)
    def dma_w2(s):
        b, c = w2_lds(s)
        return [(f"s_add_u32 m0, s{b}, {c}", f"w{s}", f"buffer_load_dwordx4 v{vW2d}, {srd(sW2)}, s{sOW2} offen lds"),
                (None, f"w{s}", f"buffer_load_dwordx4 v{vW2d+1}, {srd(sW2)}, s{sOW2} offen offset:1024 lds", f"s_add_u32 s{sOW2}, s{sOW2}, 16384")]
    def emit_dma(it):
        if it[0]: k(it[0])
        k.vmem(it[1], it[2])
        if len(it) > 3: k(it[3])
    for it in dma_chunk(0): emit_dma(it)
    for q in range(4):
        k.vmem("b1", f"buffer_load_dwordx2 v[{vP+2+2*q}:{vP+3+2*q}], v{vP}, {srd(sB1)}, 0 offen offset:{16*q}")
    for c in (1, 2):
        for it in dma_chunk(c): emit_dma(it)

    def common_setup():
        k(f"""
        v_lshrrev_b32 v{vT}, 3, v{vL}
        v_lshlrev_b32 v{vT}, 10, v{vT}
        v_and_b32 v{vT2}, 1, v{vL4}
        v_lshlrev_b32 v{vT2}, 2, v{vT2}
        v_xor_b32 v{vT2}, v{vT2}, v{vL}
        v_and_b32 v{vT2}, 7, v{vT2}
        v_lshl_add_u32 v{vW2d}, v{vT2}, 4, v{vT}
        v_add_u32 v{vW2d+1}, 7168, v{vW2d}
        s_mul_i32 s{sOW2}, s{sWV}, {448*1024}
        s_lshl_b32 s{sT0}, s{sT}, 7
        s_add_u32 s{sOW2}, s{sOW2}, s{sT0}
        s_mul_i32 s{sLW2}, s{sWV}, 6144
        v_lshrrev_b32 v{vT}, 5, v{vL}
        v_lshlrev_b32 v{vT}, 2, v{vT}
        v_bfe_u32 v{vT2}, v{vL}, 2, 2
        v_add_u32 v{vT}, v{vT}, v{vT2}
        v_lshlrev_b32 v{vT}, 7, v{vT}
        v_bfe_u32 v{vT2}, v{vL}, 3, 1
        v_lshl_or_b32 v{vT}, v{vT2}, 6, v{vT}
        v_bfe_u32 v{vT2}, v{vL}, 4, 1
        v_lshl_or_b32 v{vT}, v{vT2}, 5, v{vT}
        v_and_b32 v{vT2}, 3, v{vL}
        v_lshl_or_b32 v{vTr2}, v{vT2}, 3, v{vT}
        s_lshl_b32 s{sT0}, s{sGC}, 2
        s_add_u32 s{sT0}, s{sT0}, s{sQ}
        s_mul_i32 s{sHLD}, s{sT0}, {112*1024}
        s_mul_i32 s{sT1}, s{sWV}, {28*1024}
        s_add_u32 s{sHLD}, s{sHLD}, s{sT1}
        s_lshl_b32 s{sOUTO}, s{sT0}, 15
        s_lshl_b32 s{sT1}, s{sWV}, 13
        s_add_u32 s{sOUTO}, s{sOUTO}, s{sT1}
        s_lshl_b32 s{sT1}, s{sT}, 7
        s_add_u32 s{sOUTO}, s{sOUTO}, s{sT1}
        v_lshrrev_b32 v{vT}, 3, v{vL}
        v_and_b32 v{vT2}, 7, v{vL}
        v_lshlrev_b32 v{vOut}, 4, v{vT2}
        v_lshl_or_b32 v{vOut}, v{vT}, 10, v{vOut}
        s_lshl_b32 s{sT1}, s{sWV}, 3
        v_add_u32 v{vT}, s{sT1}, v{vT}
        v_and_b32 v{vRR}, 3, v{vL}
        v_lshlrev_b32 v{vRR}, 2, v{vRR}
        v_xor_b32 v{vT}, v{vT}, v{vRR}
        v_lshlrev_b32 v{vT}, 4, v{vT}
        v_lshl_or_b32 v{vRR}, v{vT2}, 10, v{vT}
        v_add_u32 v{vRR}, {XB+16384}, v{vRR}
        s_lshl_b32 s{sT1}, s{sWV}, 13
        s_add_u32 s{sT1}, s{sT1}, {XB+16384}
        v_add_u32 v{vRW}, s{sT1}, v{vL16}
        v_xor_b32 v{vRW+1}, 64, v{vRW}
        v_xor_b32 v{vRW+2}, 128, v{vRW}
        v_xor_b32 v{vRW+3}, 192, v{vRW}
        s_lshl_b32 s{sT0}, s{sGC}, 3
        s_add_u32 s{sT0}, s{sT0}, s{sWV}
        s_lshl_b32 s{sT0}, s{sT0}, 7
        s_add_u32 s{sT0}, s{sT0}, {FOFF}
        v_lshlrev_b32 v{vRdy}, 2, v{vL}
        v_add_u32 v{vPoll}, s{sT0}, v{vRdy}
        v_mov_b32 v{vOne}, 1
        v_mov_b32 v{vT}, 0x7ff00000
        v_cmp_gt_u32 vcc, 14, v{vL}
        s_nop 1
        v_cndmask_b32 v{vPoll}, v{vT}, v{vPoll}, vcc
        v_cndmask_b32 v{vE14}, 0, v{vOne}, vcc
        v_cmp_gt_u32 vcc, 16, v{vL}
        s_nop 1
        v_cndmask_b32 v{vE16}, 0, v{vOne}, vcc
        """)
    k(f"""
    v_lshrrev_b32 v{vT}, 5, v{vL}
    v_lshlrev_b32 v{vT}, 3, v{vT}
    v_bfe_u32 v{vT2}, v{vL}, 2, 2
    v_add_u32 v{vT}, v{vT}, v{vT2}
    v_lshlrev_b32 v{vT}, 8, v{vT}
    v_xor_b32 v{vT2}, s{sWV}, v{vT2}
    v_lshl_or_b32 v{vT}, v{vT2}, 6, v{vT}
    v_bfe_u32 v{vT2}, v{vL}, 4, 1
    v_lshl_or_b32 v{vT}, v{vT2}, 5, v{vT}
    v_and_b32 v{vT2}, 3, v{vL}
    v_lshl_or_b32 v{vTr1}, v{vT2}, 3, v{vT}
    v_and_b32 v{vT}, 31, v{vL}
    v_lshlrev_b32 v{vT}, 7, v{vT}
    v_lshrrev_b32 v{vT2}, 5, v{vL}
    v_bfe_u32 v{vXr}, v{vL}, 1, 3
    v_xor_b32 v{vT2}, v{vT2}, v{vXr}
    v_lshl_or_b32 v{vXr}, v{vT2}, 4, v{vT}
    v_xor_b32 v{vXr+1}, 32, v{vXr}
    v_xor_b32 v{vXr+2}, 64, v{vXr}
    v_xor_b32 v{vXr+3}, 96, v{vXr}
    s_mul_i32 s{sHST}, s{sGP}, {4*112*1024}
    s_lshl_b32 s{sT0}, s{sJ}, 13
    s_add_u32 s{sHST}, s{sHST}, s{sT0}
    s_lshl_b32 s{sT0}, s{sWV}, 11
    s_add_u32 s{sHST}, s{sHST}, s{sT0}
    ; flag store: fb = 4j+w; w' = fb/14; slot = fb%14 ; FOFF + (gp*8 + w')*128 + slot*4  (+512 for round b)
    s_lshl_b32 s{sT0}, s{sJ}, 2
    s_add_u32 s{sT0}, s{sT0}, s{sWV}
    s_mul_i32 s{sT1}, s{sT0}, 0x124a
    s_lshr_b32 s{sT1}, s{sT1}, 16
    s_mul_i32 s{sT2}, s{sT1}, 14
    s_sub_u32 s{sT0}, s{sT0}, s{sT2}
    s_lshl_b32 s{sT0}, s{sT0}, 2
    s_lshl_b32 s{sT2}, s{sGP}, 3
    s_add_u32 s{sT1}, s{sT1}, s{sT2}
    s_lshl_b32 s{sT1}, s{sT1}, 7
    s_add_u32 s{sT0}, s{sT0}, s{sT1}
    s_add_u32 s{sT0}, s{sT0}, {FOFF}
    v_mov_b32 v{vFst}, 0x7ff00000
    v_mov_b32 v{vT}, s{sT0}
    v_cmp_eq_u32 vcc, 0, v{vL}
    s_nop 1
    v_cndmask_b32 v{vFst}, v{vFst}, v{vT}, vcc
    """)
    common_setup()
    k.wait(vm="b1")
    for q in range(4):
        for h in range(2):
            src = vP + 2 + 2*q + h
            k(f"v_lshlrev_b32 v{vB1+4*q+2*h}, 16, v{src}\nv_and_b32 v{vB1+4*q+2*h+1}, 0xffff0000, v{src}")

    hi_base = [False]
    def rebase(want):
        if want != hi_base[0]:
            op = "v_add_u32" if want else "v_subrev_u32"
            for r in [vTr1] + [vXr + i for i in range(4)]:
                k(f"{op} v{r}, 49152, v{r}")
            hi_base[0] = want
    def reads_a(c, s):
        slot = (c & 3) * 24576 - (49152 if hi_base[0] else 0)
        ks = 4*c + s
        for t in range(2):
            k.lds(f"r{ks}", f"ds_read_b64_tr_b16 v[{vF+4*ks+2*t}:{vF+4*ks+2*t+1}], v{vTr1} offset:{slot+4096*s+1024*t}")
        for mb in range(2):
            a = aX + 8*(ks & 1) + 4*mb
            k.lds(f"r{ks}", f"ds_read_b128 a[{a}:{a+3}], v{vXr+s} offset:{slot+16384+4096*mb}")
    def mfma1(part, ks, mb, buf):
        d = vAcc + 32*part + 16*mb
        c = f"v[{vB1}:{vB1+15}]" if ks == 0 else f"v[{d}:{d+15}]"
        a = aX + 8*buf + 4*mb
        k(f"v_mfma_f32_32x32x16_bf16 v[{d}:{d+15}], v[{vF+4*ks}:{vF+4*ks+3}], a[{a}:{a+3}], {c}")
    dq = []
    for c in range(3, 8): dq += dma_chunk(c)
    xbq = []
    for c in range(8): xbq += dma_xb(c)
    stamp()
    for c in range(8):
        k.wait(vm=f"a{c}", lg=[f"r{4*c-1}"])
        k("s_barrier")
        if c == 0: stamp()
        rebase((c & 3) >= 2)
        if c == 5:
            k(f"v_add_u32 v{vW1d}, 65536, v{vXd}\nv_add_u32 v{vW1d+1}, 65536, v{vXd+1}")
        reads_a(c, 0)
        q = (dq if c < 5 else xbq)
        for s in range(4):
            if s < 3: reads_a(c, s + 1)
            n = (2, 2, 1, 1)[s]
            for _ in range(n):
                if q: emit_dma(q.pop(0))
            k.wait(lg=f"r{4*c+s}")
            mfma1(0, 4*c+s, 0, s & 1); mfma1(0, 4*c+s, 1, s & 1)
    assert not dq and not xbq
    stamp()
    for i in range(4):
        k(f"v_add_u32 v{vXr+i}, {XB-49152}, v{vXr+i}")
    def reads_b(ks):
        c, s = ks >> 2, ks & 3
        for mb in range(2):
            a = aX + 8*(ks & 1) + 4*mb
            k.lds(f"b{ks}", f"ds_read_b128 a[{a}:{a+3}], v{vXr+s} offset:{c*8192+4096*mb}")
    def epi1(part):
        L = []
        for mb in range(2):
            d = vAcc + 32*part + 16*mb; p = vP + 8*mb
            for half in range(2):
                for r in range(8*half, 8*half + 8):
                    L.append(lambda r=r, d=d: k(f"v_max_f32 v{d+r}, 0, v{d+r}"))
                for r in range(8*half, 8*half + 8):
                    L.append(lambda r=r, d=d: k(f"v_mul_f32 v{d+r}, v{d+r}, v{d+r}"))
                for r in range(4*half, 4*half + 4):
                    L.append(lambda r=r, d=d, p=p: k(f"v_cvt_pk_bf16_f32 v{p+r}, v{d+2*r}, v{d+2*r+1}"))
                def st(mb=mb, half=half, p=p):
                    if half == 0 and (mb or part): k(f"s_add_u32 s{sHST}, s{sHST}, {112*1024}")
                    k.vmem(f"st{part}", f"buffer_store_dwordx4 v[{p+4*half}:{p+4*half+3}], v{vL16}, {srd(sWS)}, s{sHST} offen offset:{1024*half} {hst}")
                L.append(st)
        return L
    k.wait(vm=["xb0", "xb1"], lg="r31")
    k("s_barrier")
    reads_b(0)
    ep = epi1(0)
    w2q = []
    for s in range(14): w2q += [(s, it) for it in dma_w2(s)]
    rdy_done = False
    for ks in range(32):
        if ks % 8 == 7 and ks < 31:
            st = (ks + 1) // 8
            k.wait(vm=[f"xb{2*st}", f"xb{2*st+1}"], lg=f"b{ks}")
            k("s_barrier")
        if ks < 31: reads_b(ks + 1)
        k.wait(lg=f"b{ks}")
        for mb in range(2):
            mfma1(1, ks, mb, ks & 1)
            if ks >= 2:
                for _ in range(4):
                    if ep: ep.pop(0)()
            if not ep and not rdy_done:
                k.vmem("rdy", f"buffer_load_dword v{vB1+12}, v{vRdy}, {srd(sDBG)}, 0 offen sc1"); rdy_done = True
        if w2q and (w2q[0][0] < 12 or ks >= 16): emit_dma(w2q.pop(0)[1])
    while w2q: emit_dma(w2q.pop(0)[1])
    stamp()
    for f in epi1(1): f()
    stamp()
    def spin(label, vgot, vexp, reload):
        k(f"""v_cmp_ne_u32 vcc, v{vgot}, v{vexp}
        s_cbranch_vccz {label}_ok
        s_mov_b32 s{sCNT}, 0
        {label}_loop:
        s_sleep {sleep}
        {reload}
        s_add_u32 s{sCNT}, s{sCNT}, 1
        s_cmp_gt_u32 s{sCNT}, 0x100000
        s_cbranch_scc1 {label}_ok
        s_waitcnt vmcnt(0)
        v_cmp_ne_u32 vcc, v{vgot}, v{vexp}
        s_cbranch_vccnz {label}_loop
        {label}_ok:""")
    k.wait(vm=["st0", "rdy"])
    spin("L_rdy", vB1+12, vE16, f"buffer_load_dword v{vB1+12}, v{vRdy}, {srd(sDBG)}, 0 offen sc1")
    k.vmem("fa", f"buffer_store_dword v{vOne}, v{vFst}, {srd(sWS)}, 0 offen sc1")
    stamp()
    def tr2_setup():
        k(f"""v_add_u32 v{vW1d}, s{sLW2}, v{vTr2}
        v_xor_b32 v{vW1d+1}, 64, v{vW1d}
        v_add_u32 v{vW1d+2}, 49152, v{vW1d}
        v_add_u32 v{vW1d+3}, 49152, v{vW1d+1}
        s_add_u32 s{sT0}, s{sLW1}, {XB}
        v_add_u32 v{vXd}, s{sT0}, v{vTr2}
        v_xor_b32 v{vXd+1}, 64, v{vXd}""")
    def tr2(s):
        i = s % 14
        if i < 6: base, off = vW1d, (i // 3) * 24576 + (i % 3) * 2048
        elif i < 12: base, off = vW1d + 2, (i // 3) * 24576 + (i % 3) * 2048 - 49152
        else: base, off = vXd, (i - 12) * 2048
        for nb in range(2):
            for t in range(2):
                a = aW2 + 8*s + 4*nb + 2*t
                k.lds(f"t{s}", f"ds_read_b64_tr_b16 a[{a}:{a+1}], v{base+nb} offset:{off+1024*t}")
    tr2_setup()
    polla = lambda r: f"buffer_load_dword v{vB1+13+r}, v{vPoll}, {srd(sWS)}, 0 offen offset:{512*r} sc1"
    for s in range(14):
        k.wait(vm=f"w{s}")
        tr2(s)
        if s >= 1:
            k.wait(lg=f"t{s-1}")
            for it in dma_w2(s - 1 + 14): emit_dma(it)
        if s == 9: k.vmem("pa", polla(0))
    k.wait(lg="t13")
    for it in dma_w2(27): emit_dma(it)
    k.wait(vm="st1")
    k.vmem("fb", f"buffer_store_dword v{vOne}, v{vFst}, {srd(sWS)}, 0 offen offset:512 sc1")
    stamp()
    k("s_branch L_join")
    busy_vm = list(k.vm); busy_lg = list(k.lg)
    k.vm = []; k.lg = []
    k("L_spare0:")
    k(f"""s_sub_u32 s{sT0}, s{sIDX}, 28
    s_add_u32 s{sT1}, s{sT0}, s{sWV}
    s_lshl_b32 s{sT2}, s{sWV}, 1
    s_add_u32 s{sT1}, s{sT0}, s{sT2}
    s_cmp_ge_u32 s{sT1}, 2
    s_cbranch_scc1 L_spare1
    s_lshl_b32 s{sT1}, s{sXCD}, 1
    s_add_u32 s{sT1}, s{sT1}, s{sT0}
    s_lshl_b32 s{sT2}, s{sT1}, 10
    s_add_u32 s{sT2}, s{sT2}, {FOFF}
    v_mov_b32 v{vP}, 0
    v_mov_b32 v{vP+1}, 0
    v_mov_b32 v{vP+2}, 0
    v_mov_b32 v{vP+3}, 0
    buffer_store_dwordx4 v[{vP}:{vP+3}], v{vL16}, {srd(sWS)}, s{sT2} offen sc1
    s_lshl_b32 s{sT1}, s{sT1}, 2
    v_mov_b32 v{vT}, s{sT1}
    v_mov_b32 v{vT2}, 0x7ff00000
    v_cmp_eq_u32 vcc, 0, v{vL}
    v_mov_b32 v{vOne}, 1
    s_nop 0
    v_cndmask_b32 v{vT}, v{vT2}, v{vT}, vcc
    s_waitcnt vmcnt(0)
    buffer_store_dword v{vOne}, v{vT}, {srd(sDBG)}, 0 offen sc1
    L_spare1:""")
    common_setup()
    tr2_setup()
    for s in range(14):
        for it in dma_w2(s): emit_dma(it)
    k.vmem("rdy", f"buffer_load_dword v{vB1+12}, v{vRdy}, {srd(sDBG)}, 0 offen sc1")
    for s in range(14):
        k.wait(vm=f"w{s}")
        tr2(s)
        if s >= 1:
            k.wait(lg=f"t{s-1}")
            for it in dma_w2(s - 1 + 14): emit_dma(it)
    k.wait(lg="t13")
    for it in dma_w2(27): emit_dma(it)
    k.wait_all()
    spin("L_rdy2", vB1+12, vE16, f"buffer_load_dword v{vB1+12}, v{vRdy}, {srd(sDBG)}, 0 offen sc1")
    k(polla(0)); k.wait_all()
    if stamps:
        for i in range(1, nstamp[0]): k(f"s_mov_b64 s[{72+2*i}:{73+2*i}], s[72:73]")
    k.vm = busy_vm; k.lg = busy_lg
    k("L_join:")
    k.n += 20
    k.wait(vm="pa")
    spin("L_pa", vB1+13, vE14, polla(0))
    stamp()
    hq = [(r, s) for r in range(2) for s in range(28)]
    hidx = [0]
    def hbuf(i): return vF + 4*(i % 32)
    def hload():
        i = hidx[0]; r, s = hq[i]; hidx[0] += 1
        if s % 4 == 0 and i > 0:
            d = 4096 if s else (2*112*1024 - 24*1024)
            k(f"s_add_u32 s{sHLD}, s{sHLD}, {d}")
        b = hbuf(i)
        k.vmem(f"h{i}", f"buffer_load_dwordx4 v[{b}:{b+3}], v{vL16}, {srd(sWS)}, s{sHLD} offen offset:{1024*(s%4)} {hld}")
    for i in range(14):
        if i < DH: hload()
        k.wait(vm=f"w{14+i}")
        tr2(14 + i)
    while hidx[0] < DH: hload()
    k(f"s_lshl_b32 s{sT1}, s{sT}, 7\nv_and_b32 v{vT}, 0x70, v{vOut}")
    k.vmem("b2", f"buffer_load_dwordx4 v[{vB1}:{vB1+3}], v{vT}, {srd(sB2)}, s{sT1} offen")
    def mfma2(r, s):
        b = hbuf(28*r + s)
        for nb in range(2):
            d = vAcc + 32*r + 16*nb
            c = "0" if s == 0 else f"v[{d}:{d+15}]"
            a = aW2 + 8*s + 4*nb
            k(f"v_mfma_f32_32x32x16_bf16 v[{d}:{d+15}], a[{a}:{a+3}], v[{b}:{b+3}], {c}")
    def red_write(r):
        L = []
        for nb in range(2):
            for q in range(4):
                d = vAcc + 32*r + 16*nb + 4*q
                L.append(lambda d=d, nb=nb, q=q: k.lds(f"rw{r}", f"ds_write_b128 v{vRW+q}, v[{d}:{d+3}] offset:{1024*(4*nb+q)}"))
        return L
    def red_read(r):
        L = []
        for src in range(4):
            for hi in range(2):
                d = vAcc + 32*r + 8*src + 4*hi
                L.append(lambda d=d, src=src, hi=hi: k.lds(f"rr{r}_{src}", f"ds_read_b128 v[{d}:{d+3}], v{vRR} offset:{8192*src+512*hi}"))
        return L
    def red_fin(r):
        L = []; d = vAcc + 32*r
        L.append(lambda: k.wait(lg=f"rr{r}_1"))
        for e in range(8): L.append(lambda e=e: k(f"v_add_f32 v{d+e}, v{d+e}, v{d+8+e}"))
        L.append(lambda: k.wait(lg=f"rr{r}_3"))
        for e in range(8): L.append(lambda e=e: k(f"v_add_f32 v{d+16+e}, v{d+16+e}, v{d+24+e}"))
        for e in range(8): L.append(lambda e=e: k(f"v_add_f32 v{d+e}, v{d+e}, v{vB1+4+e}"))
        for e in range(8): L.append(lambda e=e: k(f"v_add_f32 v{d+e}, v{d+e}, v{d+16+e}"))
        for e in range(4): L.append(lambda e=e: k(f"v_cvt_pk_bf16_f32 v{vP+4*r+e}, v{d+2*e}, v{d+2*e+1}"))
        def st():
            if r: k(f"s_add_u32 s{sOUTO}, s{sOUTO}, 65536")
            k.vmem(f"o{r}", f"buffer_store_dwordx4 v[{vP+4*r}:{vP+4*r+3}], v{vOut}, {srd(sOUT)}, s{sOUTO} offen {ost}")
        L.append(st)
        return L
    k.wait(lg="t27")
    pb_at = 28 - DH - 6 if 28 - DH - 6 > 0 else 0
    for s in range(28):
        k.wait(vm=f"h{s}")
        mfma2(0, s)
        if s == pb_at: k.vmem("pb", polla(1))
        if hidx[0] == 28:
            k.wait(vm="pb")
            spin("L_pb", vB1+14, vE14, polla(1))
            stamp()
        hload()
    stamp()
    fill = []
    for e in range(4):
        fill.append(lambda e=e: k(f"v_lshlrev_b32 v{vB1+4+2*e}, 16, v{vB1+e}\nv_and_b32 v{vB1+5+2*e}, 0xffff0000, v{vB1+e}"))
    rw = red_write(0); rr = red_read(0); rf = red_fin(0)
    for s in range(28):
        k.wait(vm=f"h{28+s}")
        mfma2(1, s)
        if hidx[0] < 56: hload()
        if s < 4: fill.pop(0)()
        if 4 <= s < 12: rw.pop(0)()
        if s == 13:
            k.wait(lg="rw0"); k("s_barrier")
        if 14 <= s < 18: rr.pop(0)(); rr.pop(0)()
        if s == 18:
            for r_ in (vRW, vRW+1, vRW+2, vRW+3, vRR): k(f"v_subrev_u32 v{r_}, {XB+16384}, v{r_}")
        if s >= 19:
            for _ in range(5):
                if rf: rf.pop(0)()
    while rf: rf.pop(0)()
    stamp()
    for f in red_write(1): f()
    k.wait(lg="rw1"); k("s_barrier")
    for f in red_read(1): f()
    for f in red_fin(1): f()
    if stamps:
        k.wait_all(); stamp()
        n = nstamp[0]
        k(f"""s_memrealtime s[{72+2*n}:{73+2*n}]
        s_waitcnt lgkmcnt(0)
        s_lshl_b32 s{sT0}, s2, 2
        s_add_u32 s{sT0}, s{sT0}, s{sWV}
        s_lshl_b32 s{sT0}, s{sT0}, 7
        s_add_u32 s{sT0}, s{sT0}, {STAMP}
        s_mov_b64 exec, 1
        v_mov_b32 v{vT}, 0""")
        for i in range(n + 2):
            k(f"v_mov_b32 v2, s{70+2*i}\nv_mov_b32 v3, s{71+2*i}\nbuffer_store_dwordx2 v[2:3], v{vT}, {srd(sWS)}, s{sT0} offen offset:{8*i}\ns_nop 1")
        assert 72 + 2*n + 1 < 102
        k.nst = n + 2
    k(f"{end}:\ns_endpgm")
    return k

if __name__ == "__main__":
    import argparse
    ap = argparse.ArgumentParser()
    ap.add_argument("-o", default="k.s"); ap.add_argument("--stamps", action="store_true")
    ap.add_argument("--opt", default="")
    a = ap.parse_args()
    kw = eval(f"dict({a.opt})")
    k = gen(stamps=a.stamps, **kw)
    open(a.o, "w").write(make_file([k], [(k.name, 256, 256, 163840)], single=True))
    build(a.o)
    print("ok", a.o, "instrs", len(k.lines), "nst", getattr(k, "nst", 0))
```

```python
import sys, re
from asmlib import *

STAMP = 200 << 20
HOFF = 0
FOFF = 8 << 20

class E(K):
    def __init__(s, name, **kw):
        super().__init__(name, **kw)
        s.vm = []
        s.lg = []
        s.n = 0
        s.mfma_w = {}
        s.valu_w = {}
        s.st_r = {}
        s.m0_w = -10
        s.sg_valu = {}
    @staticmethod
    def regs(op):
        op = op.strip()
        m = re.fullmatch(r"([vas])\[(\d+):(\d+)\]", op)
        if m: return [(m.group(1), i) for i in range(int(m.group(2)), int(m.group(3)) + 1)]
        m = re.fullmatch(r"([vas])(\d+)", op)
        if m: return [(m.group(1), int(m.group(2)))]
        return []
    def pad(s, need):
        while need > 0:
            d = min(need, 16)
            s.lines.append(f"    s_nop {d-1}")
            s.n += d; need -= d
    def i(s, line):
        line = line.strip()
        if not line or line.startswith(";"):
            if line: s.lines.append("    " + line)
            return
        if line.endswith(":"):
            s.lines.append(line); return
        code = line.split(";")[0].strip()
        mn, _, rest = code.partition(" ")
        ops = [o.strip() for o in re.split(r",(?![^\[]*\])", rest)] if rest else []
        ops0 = [o.split(" ")[0] for o in ops]
        allr = [r for o in ops0 for r in s.regs(o)]
        need = 0
        is_mfma = mn.startswith("v_mfma")
        is_valu = mn.startswith("v_") and not is_mfma
        is_mem = mn.startswith(("buffer_", "global_", "ds_"))
        if is_mfma:
            d = s.regs(ops0[0]); srcs = [r for o in ops0[1:] for r in s.regs(o)]
            for r in srcs:
                if r in s.valu_w: need = max(need, 2 - (s.n - s.valu_w[r] - 1))
            ab = s.regs(ops0[1]) + s.regs(ops0[2])
            for r in ab:
                if r in s.mfma_w: need = max(need, 12 - (s.n - s.mfma_w[r] - 1))
            c = s.regs(ops0[3])
            if c != d:
                for r in c + d:
                    if r in s.mfma_w: need = max(need, 12 - (s.n - s.mfma_w[r] - 1))
        elif is_valu or is_mem:
            for r in allr:
                if r in s.mfma_w: need = max(need, 12 - (s.n - s.mfma_w[r] - 1))
        if is_valu:
            dst = s.regs(ops0[0]) if ops0 else []
            for r in dst:
                if r in s.st_r: need = max(need, 2 - (s.n - s.st_r[r] - 1))
            if mn.startswith(("v_readfirstlane", "v_readlane")):
                for r in s.regs(ops0[1]):
                    if r in s.valu_w: need = max(need, 1 - (s.n - s.valu_w[r] - 1))
            if mn.startswith("v_permlane"):
                for r in allr:
                    if r in s.valu_w: need = max(need, 2 - (s.n - s.valu_w[r] - 1))
            for r in allr:
                if r[0] == "s" and r in s.sg_valu: need = max(need, 2 - (s.n - s.sg_valu[r] - 1))
        if is_mem:
            for r in allr:
                if r[0] == "s" and r in s.sg_valu: need = max(need, 5 - (s.n - s.sg_valu[r] - 1))
            if code.endswith(" lds"): need = max(need, 1 - (s.n - s.m0_w - 1))
        s.pad(need)
        s.lines.append("    " + line)
        if is_mfma:
            for r in s.regs(ops0[0]): s.mfma_w[r] = s.n
        if is_valu:
            for r in (s.regs(ops0[0]) if ops0 else []):
                if r[0] == "s": s.sg_valu[r] = s.n
                else: s.valu_w[r] = s.n
            if mn.startswith("v_permlane"):
                for r in s.regs(ops0[1]): s.valu_w[r] = s.n
        if mn.startswith("buffer_store_dwordx"):
            for r in s.regs(ops0[0]): s.st_r[r] = s.n
        if mn.startswith("s_") and ops0 and ops0[0] == "m0": s.m0_w = s.n
        if mn == "s_nop": s.n += int(ops0[0]) + 1
        else: s.n += 1
    def __call__(s, text=""):
        for l in text.split("\n"): s.i(l)
    def vmem(s, tag, line):
        s.i(line); s.vm.append(tag); assert len(s.vm) <= 63, "vmcnt overflow"
    def lds(s, tag, line):
        s.i(line); s.lg.append(tag)
    def _wait(s, q, tags):
        last = max((i for i, t in enumerate(q) if t in tags), default=-1)
        return last
    def wait(s, vm=(), lg=(), force=False):
        if isinstance(vm, str): vm = (vm,)
        if isinstance(lg, str): lg = (lg,)
        parts = []
        l = s._wait(s.vm, set(vm))
        if l >= 0:
            n = len(s.vm) - 1 - l; s.vm = s.vm[l + 1:]; parts.append(f"vmcnt({n})")
        l = s._wait(s.lg, set(lg))
        if l >= 0:
            n = len(s.lg) - 1 - l
            n = min(n, 15); s.lg = s.lg[len(s.lg) - n:] if n else []; parts.append(f"lgkmcnt({n})")
        if parts: s.i("s_waitcnt " + " ".join(parts))
    def wait_all(s, vm=True, lg=True):
        p = []
        if vm: p.append("vmcnt(0)"); s.vm = []
        if lg: p.append("lgkmcnt(0)"); s.lg = []
        s.i("s_waitcnt " + " ".join(p))

def gen(name=MAIN, stamps=False, rot=0, hst="sc1", hld="sc1", ost="", DH=12, sleep=1, padto=0, padev=None):
    k = E(name, vgpr=512, accum=256, sgpr=102)
    nstamp = [0]
    evn = [1]
    def stamp():
        if padto:
            if evn[0] == padev: k("s_memrealtime s[72:73]"); k.wait_all(vm=False)
            evn[0] += 1
        if not stamps: return
        i = nstamp[0]; nstamp[0] += 1
        k(f"s_memtime s[{72+2*i}:{73+2*i}]"); k.wait_all(vm=False)
    sX, sW1, sW2, sWS, sOUT, sDBG, sB1, sB2 = 20, 24, 28, 32, 36, 40, 44, 48
    srd = lambda b: f"s[{b}:{b+3}]"
    sWV, sIDX, sXCD, sGP, sJ, sGC, sQ, sT = 3, 4, 5, 6, 7, 8, 9, 10
    sT0, sT1, sT2 = 11, 12, 13
    sLW1, sLX, sLW2 = 14, 15, 16
    sHST, sHLD, sOW2 = 17, 18, 19
    sCW1 = 52
    sCX = 60
    sOUTO, sCNT = 68, 69
    vL, vL16 = 0, 1
    vW1d = 2
    vXd = 6
    vTr1 = 8
    vXr = 9
    vW2d = 13
    vT = 15
    vB1 = 16
    vP = 32
    vTr2 = 48
    vFst = 50
    vPoll = 51
    vE14, vE16 = 52, 53
    vRdy = 54
    vRW = 55
    vRR = 59
    vOut = 60
    vOne = 61
    vL4 = 62
    vT2 = 63
    vAcc = 64
    vF = 128
    aW2 = 0
    aX = 224
    XB = 98304
    end = f"L_end_{name}"

    k(f"s_cmp_ge_u32 s2, 256\ns_cbranch_scc1 {end}")
    if stamps or padto: k("s_memrealtime s[70:71]")
    for b, off in ((sX, 0), (sW1, 8), (sB1, 16), (sW2, 24), (sB2, 32), (sOUT, 40), (sDBG, 48), (sWS, 56)):
        k(f"s_load_dwordx2 s[{b}:{b+1}], s[0:1], {off}")
    if stamps: k("s_memtime s[72:73]"); nstamp[0] = 1
    for b, sz in ((sX, 2048*1024), (sW1, 512*3584), (sB1, 3584), (sW2, 1792*1024), (sB2, 1024), (sOUT, 2048*1024), (sDBG, 64), (sWS, 0x10000000 if stamps else (FOFF + 16384))):
        k(f"s_mov_b32 s{b+2}, {sz}\ns_mov_b32 s{b+3}, 0x20000")
    k(f"""
    v_lshrrev_b32 v{vT}, 6, v0
    v_and_b32 v{vL}, 63, v0
    v_readfirstlane_b32 s{sWV}, v{vT}
    s_and_b32 s{sXCD}, s2, 7
    s_lshr_b32 s{sIDX}, s2, 3
    s_lshr_b32 s{sT0}, s{sXCD}, 1
    s_lshl_b32 s{sT0}, s{sT0}, 2
    s_and_b32 s{sGP}, s{sIDX}, 3
    s_add_u32 s{sGP}, s{sGP}, s{sT0}
    s_and_b32 s{sT0}, s{sXCD}, 1
    s_mul_i32 s{sT0}, s{sT0}, 7
    s_lshr_b32 s{sJ}, s{sIDX}, 2
    s_add_u32 s{sJ}, s{sJ}, s{sT0}
    s_and_b32 s{sT}, s{sIDX}, 7
    s_bfe_u32 s{sQ}, s{sIDX}, 0x10003
    s_lshr_b32 s{sGC}, s{sIDX}, 4
    s_lshl_b32 s{sT0}, s{sXCD}, 1
    s_add_u32 s{sGC}, s{sGC}, s{sT0}
    v_lshlrev_b32 v{vL16}, 4, v{vL}
    v_lshrrev_b32 v{vL4}, 4, v{vL}          ; l>>4
    """)
    k(f"""
    s_lshl_b32 s{sT0}, s{sWV}, 4
    v_add_u32 v{vT}, s{sT0}, v{vL4}          ; row = 16w + (l>>4)
    v_mul_u32_u24 v{vT}, 3584, v{vT}
    v_lshlrev_b32 v{vT2}, 2, v{vL4}
    v_xor_b32 v{vT2}, v{vT2}, v{vL}
    v_and_b32 v{vT2}, 15, v{vT2}
    v_lshl_add_u32 v{vW1d}, v{vT2}, 4, v{vT}
    v_add_u32 v{vW1d+1}, {4*3584-1024}, v{vW1d}
    v_add_u32 v{vW1d+2}, {2*(4*3584-1024)}, v{vW1d}
    v_add_u32 v{vW1d+3}, {3*(4*3584-1024)}, v{vW1d}
    v_lshrrev_b32 v{vT}, 3, v{vL}
    v_add_u32 v{vT}, s{sT0}, v{vT}
    v_lshlrev_b32 v{vT}, 10, v{vT}
    v_xor_b32 v{vT2}, v{vL4}, v{vL}
    v_and_b32 v{vT2}, 7, v{vT2}
    v_lshl_add_u32 v{vXd}, v{vT2}, 4, v{vT}
    v_xor_b32 v{vXd+1}, 64, v{vXd}
    v_add_u32 v{vXd+1}, {8*1024-1024}, v{vXd+1}
    s_lshl_b32 s{sT1}, s{sJ}, 8
    s_lshl_b32 s{sT2}, s{sGP}, 17
    s_lshl_b32 s{sLW1}, s{sWV}, 12
    s_lshl_b32 s{sLX}, s{sWV}, 11
    """)
    if rot:
        k(f"""s_lshr_b32 s{sT0}, s{sIDX}, 2
        s_xor_b32 s{sT0}, s{sT0}, s{sIDX}
        s_and_b32 s{sT0}, s{sT0}, 1
        s_lshl_b32 s{sT0}, s{sT0}, 2""")
        for c in range(8):
            k(f"""s_xor_b32 s{sCNT}, s{sT0}, {c}
            s_mul_i32 s{sCW1+c}, s{sCNT}, {64*3584}
            s_add_u32 s{sCW1+c}, s{sCW1+c}, s{sT1}
            s_lshl_b32 s{sCX+c}, s{sCNT}, 7
            s_add_u32 s{sCX+c}, s{sCX+c}, s{sT2}""")
    else:
        for c in range(8):
            k(f"s_add_u32 s{sCW1+c}, s{sT1}, {c*64*3584}\ns_add_u32 s{sCX+c}, s{sT2}, {c*128}")
    k(f"""
    s_lshl_b32 s{sT0}, s{sWV}, 6
    s_add_u32 s{sT0}, s{sT0}, s{sT1}
    v_lshrrev_b32 v{vT}, 5, v{vL}
    v_lshlrev_b32 v{vT}, 3, v{vT}
    v_add_u32 v{vP}, s{sT0}, v{vT}
    s_cmp_ge_u32 s{sIDX}, 28
    s_waitcnt lgkmcnt(0)
    s_cbranch_scc1 L_spare0
    """)
    def dma_chunk(c):
        slot = (c & 3) * 24576
        it = []
        for ii in range(4):
            pre = f"s_add_u32 m0, s{sLW1}, {slot}" if ii == 0 else None
            it.append((pre, f"a{c}", f"buffer_load_dwordx4 v{vW1d+ii}, {srd(sW1)}, s{sCW1+c} offen offset:{1024*ii} lds"))
        for ii in range(2):
            pre = f"s_add_u32 m0, s{sLX}, {slot+16384}" if ii == 0 else None
            it.append((pre, f"a{c}", f"buffer_load_dwordx4 v{vXd+ii}, {srd(sX)}, s{sCX+c} offen offset:{1024*ii} lds"))
        return it
    def dma_xb(c):
        it = []
        for ii in range(2):
            pre = f"s_add_u32 m0, s{sLX}, {XB+c*8192}" if ii == 0 else None
            it.append((pre, f"xb{c}", f"buffer_load_dwordx4 v{vW1d+ii}, {srd(sX)}, s{sCX+c} offen offset:{1024*ii} lds"))
        return it
    def w2slot(s):
        i = s % 14
        return (i // 3) * 24576 + (i % 3) * 2048 if i < 12 else None, i
    def w2_lds(s):
        i = s % 14
        if i < 12: return (sLW2, (i // 3) * 24576 + (i % 3) * 2048)
        return (sLW1, XB + (i - 12) * 2048)
    def dma_w2(s):
        b, c = w2_lds(s)
        return [(f"s_add_u32 m0, s{b}, {c}", f"w{s}", f"buffer_load_dwordx4 v{vW2d}, {srd(sW2)}, s{sOW2} offen lds"),
                (None, f"w{s}", f"buffer_load_dwordx4 v{vW2d+1}, {srd(sW2)}, s{sOW2} offen offset:1024 lds", f"s_add_u32 s{sOW2}, s{sOW2}, 16384")]
    def emit_dma(it):
        if it[0]: k(it[0])
        k.vmem(it[1], it[2])
        if len(it) > 3: k(it[3])
    for it in dma_chunk(0): emit_dma(it)
    for q in range(4):
        k.vmem("b1", f"buffer_load_dwordx2 v[{vP+2+2*q}:{vP+3+2*q}], v{vP}, {srd(sB1)}, 0 offen offset:{16*q}")
    for c in (1, 2):
        for it in dma_chunk(c): emit_dma(it)

    def common_setup():
        k(f"""
        v_lshrrev_b32 v{vT}, 3, v{vL}
        v_lshlrev_b32 v{vT}, 10, v{vT}
        v_and_b32 v{vT2}, 1, v{vL4}
        v_lshlrev_b32 v{vT2}, 2, v{vT2}
        v_xor_b32 v{vT2}, v{vT2}, v{vL}
        v_and_b32 v{vT2}, 7, v{vT2}
        v_lshl_add_u32 v{vW2d}, v{vT2}, 4, v{vT}
        v_add_u32 v{vW2d+1}, 7168, v{vW2d}
        s_mul_i32 s{sOW2}, s{sWV}, {448*1024}
        s_lshl_b32 s{sT0}, s{sT}, 7
        s_add_u32 s{sOW2}, s{sOW2}, s{sT0}
        s_mul_i32 s{sLW2}, s{sWV}, 6144
        v_lshrrev_b32 v{vT}, 5, v{vL}
        v_lshlrev_b32 v{vT}, 2, v{vT}
        v_bfe_u32 v{vT2}, v{vL}, 2, 2
        v_add_u32 v{vT}, v{vT}, v{vT2}
        v_lshlrev_b32 v{vT}, 7, v{vT}
        v_bfe_u32 v{vT2}, v{vL}, 3, 1
        v_lshl_or_b32 v{vT}, v{vT2}, 6, v{vT}
        v_bfe_u32 v{vT2}, v{vL}, 4, 1
        v_lshl_or_b32 v{vT}, v{vT2}, 5, v{vT}
        v_and_b32 v{vT2}, 3, v{vL}
        v_lshl_or_b32 v{vTr2}, v{vT2}, 3, v{vT}
        s_lshl_b32 s{sT0}, s{sGC}, 2
        s_add_u32 s{sT0}, s{sT0}, s{sQ}
        s_mul_i32 s{sHLD}, s{sT0}, {112*1024}
        s_mul_i32 s{sT1}, s{sWV}, {28*1024}
        s_add_u32 s{sHLD}, s{sHLD}, s{sT1}
        s_lshl_b32 s{sOUTO}, s{sT0}, 15
        s_lshl_b32 s{sT1}, s{sWV}, 13
        s_add_u32 s{sOUTO}, s{sOUTO}, s{sT1}
        s_lshl_b32 s{sT1}, s{sT}, 7
        s_add_u32 s{sOUTO}, s{sOUTO}, s{sT1}
        v_lshrrev_b32 v{vT}, 3, v{vL}
        v_and_b32 v{vT2}, 7, v{vL}
        v_lshlrev_b32 v{vOut}, 4, v{vT2}
        v_lshl_or_b32 v{vOut}, v{vT}, 10, v{vOut}
        s_lshl_b32 s{sT1}, s{sWV}, 3
        v_add_u32 v{vT}, s{sT1}, v{vT}
        v_and_b32 v{vRR}, 3, v{vL}
        v_lshlrev_b32 v{vRR}, 2, v{vRR}
        v_xor_b32 v{vT}, v{vT}, v{vRR}
        v_lshlrev_b32 v{vT}, 4, v{vT}
        v_lshl_or_b32 v{vRR}, v{vT2}, 10, v{vT}
        v_add_u32 v{vRR}, {XB+16384}, v{vRR}
        s_lshl_b32 s{sT1}, s{sWV}, 13
        s_add_u32 s{sT1}, s{sT1}, {XB+16384}
        v_add_u32 v{vRW}, s{sT1}, v{vL16}
        v_xor_b32 v{vRW+1}, 64, v{vRW}
        v_xor_b32 v{vRW+2}, 128, v{vRW}
        v_xor_b32 v{vRW+3}, 192, v{vRW}
        s_lshl_b32 s{sT0}, s{sGC}, 3
        s_add_u32 s{sT0}, s{sT0}, s{sWV}
        s_lshl_b32 s{sT0}, s{sT0}, 7
        s_add_u32 s{sT0}, s{sT0}, {FOFF}
        v_lshlrev_b32 v{vRdy}, 2, v{vL}
        v_add_u32 v{vPoll}, s{sT0}, v{vRdy}
        v_mov_b32 v{vOne}, 1
        v_mov_b32 v{vT}, 0x7ff00000
        v_cmp_gt_u32 vcc, 14, v{vL}
        s_nop 1
        v_cndmask_b32 v{vPoll}, v{vT}, v{vPoll}, vcc
        v_cndmask_b32 v{vE14}, 0, v{vOne}, vcc
        v_cmp_gt_u32 vcc, 16, v{vL}
        s_nop 1
        v_cndmask_b32 v{vE16}, 0, v{vOne}, vcc
        """)
    k(f"""
    v_lshrrev_b32 v{vT}, 5, v{vL}
    v_lshlrev_b32 v{vT}, 3, v{vT}
    v_bfe_u32 v{vT2}, v{vL}, 2, 2
    v_add_u32 v{vT}, v{vT}, v{vT2}
    v_lshlrev_b32 v{vT}, 8, v{vT}
    v_xor_b32 v{vT2}, s{sWV}, v{vT2}
    v_lshl_or_b32 v{vT}, v{vT2}, 6, v{vT}
    v_bfe_u32 v{vT2}, v{vL}, 4, 1
    v_lshl_or_b32 v{vT}, v{vT2}, 5, v{vT}
    v_and_b32 v{vT2}, 3, v{vL}
    v_lshl_or_b32 v{vTr1}, v{vT2}, 3, v{vT}
    v_and_b32 v{vT}, 31, v{vL}
    v_lshlrev_b32 v{vT}, 7, v{vT}
    v_lshrrev_b32 v{vT2}, 5, v{vL}
    v_bfe_u32 v{vXr}, v{vL}, 1, 3
    v_xor_b32 v{vT2}, v{vT2}, v{vXr}
    v_lshl_or_b32 v{vXr}, v{vT2}, 4, v{vT}
    v_xor_b32 v{vXr+1}, 32, v{vXr}
    v_xor_b32 v{vXr+2}, 64, v{vXr}
    v_xor_b32 v{vXr+3}, 96, v{vXr}
    s_mul_i32 s{sHST}, s{sGP}, {4*112*1024}
    s_lshl_b32 s{sT0}, s{sJ}, 13
    s_add_u32 s{sHST}, s{sHST}, s{sT0}
    s_lshl_b32 s{sT0}, s{sWV}, 11
    s_add_u32 s{sHST}, s{sHST}, s{sT0}
    ; flag store: fb = 4j+w; w' = fb/14; slot = fb%14 ; FOFF + (gp*8 + w')*128 + slot*4  (+512 for round b)
    s_lshl_b32 s{sT0}, s{sJ}, 2
    s_add_u32 s{sT0}, s{sT0}, s{sWV}
    s_mul_i32 s{sT1}, s{sT0}, 0x124a
    s_lshr_b32 s{sT1}, s{sT1}, 16
    s_mul_i32 s{sT2}, s{sT1}, 14
    s_sub_u32 s{sT0}, s{sT0}, s{sT2}
    s_lshl_b32 s{sT0}, s{sT0}, 2
    s_lshl_b32 s{sT2}, s{sGP}, 3
    s_add_u32 s{sT1}, s{sT1}, s{sT2}
    s_lshl_b32 s{sT1}, s{sT1}, 7
    s_add_u32 s{sT0}, s{sT0}, s{sT1}
    s_add_u32 s{sT0}, s{sT0}, {FOFF}
    v_mov_b32 v{vFst}, 0x7ff00000
    v_mov_b32 v{vT}, s{sT0}
    v_cmp_eq_u32 vcc, 0, v{vL}
    s_nop 1
    v_cndmask_b32 v{vFst}, v{vFst}, v{vT}, vcc
    """)
    common_setup()
    k.wait(vm="b1")
    for q in range(4):
        for h in range(2):
            src = vP + 2 + 2*q + h
            k(f"v_lshlrev_b32 v{vB1+4*q+2*h}, 16, v{src}\nv_and_b32 v{vB1+4*q+2*h+1}, 0xffff0000, v{src}")

    hi_base = [False]
    def rebase(want):
        if want != hi_base[0]:
            op = "v_add_u32" if want else "v_subrev_u32"
            for r in [vTr1] + [vXr + i for i in range(4)]:
                k(f"{op} v{r}, 49152, v{r}")
            hi_base[0] = want
    def reads_a(c, s):
        slot = (c & 3) * 24576 - (49152 if hi_base[0] else 0)
        ks = 4*c + s
        for t in range(2):
            k.lds(f"r{ks}", f"ds_read_b64_tr_b16 v[{vF+4*ks+2*t}:{vF+4*ks+2*t+1}], v{vTr1} offset:{slot+4096*s+1024*t}")
        for mb in range(2):
            a = aX + 8*(ks & 1) + 4*mb
            k.lds(f"r{ks}", f"ds_read_b128 a[{a}:{a+3}], v{vXr+s} offset:{slot+16384+4096*mb}")
    def mfma1(part, ks, mb, buf):
        d = vAcc + 32*part + 16*mb
        c = f"v[{vB1}:{vB1+15}]" if ks == 0 else f"v[{d}:{d+15}]"
        a = aX + 8*buf + 4*mb
        k(f"v_mfma_f32_32x32x16_bf16 v[{d}:{d+15}], v[{vF+4*ks}:{vF+4*ks+3}], a[{a}:{a+3}], {c}")
    dq = []
    for c in range(3, 8): dq += dma_chunk(c)
    xbq = []
    for c in range(8): xbq += dma_xb(c)
    stamp()
    for c in range(8):
        k.wait(vm=f"a{c}", lg=[f"r{4*c-1}"])
        k("s_barrier")
        if c == 0: stamp()
        rebase((c & 3) >= 2)
        if c == 5:
            k(f"v_add_u32 v{vW1d}, 65536, v{vXd}\nv_add_u32 v{vW1d+1}, 65536, v{vXd+1}")
        reads_a(c, 0)
        q = (dq if c < 5 else xbq)
        for s in range(4):
            if s < 3: reads_a(c, s + 1)
            n = (2, 2, 1, 1)[s]
            for _ in range(n):
                if q: emit_dma(q.pop(0))
            k.wait(lg=f"r{4*c+s}")
            mfma1(0, 4*c+s, 0, s & 1); mfma1(0, 4*c+s, 1, s & 1)
    assert not dq and not xbq
    stamp()
    for i in range(4):
        k(f"v_add_u32 v{vXr+i}, {XB-49152}, v{vXr+i}")
    def reads_b(ks):
        c, s = ks >> 2, ks & 3
        for mb in range(2):
            a = aX + 8*(ks & 1) + 4*mb
            k.lds(f"b{ks}", f"ds_read_b128 a[{a}:{a+3}], v{vXr+s} offset:{c*8192+4096*mb}")
    def epi1(part):
        L = []
        for mb in range(2):
            d = vAcc + 32*part + 16*mb; p = vP + 8*mb
            for half in range(2):
                for r in range(8*half, 8*half + 8):
                    L.append(lambda r=r, d=d: k(f"v_max_f32 v{d+r}, 0, v{d+r}"))
                for r in range(8*half, 8*half + 8):
                    L.append(lambda r=r, d=d: k(f"v_mul_f32 v{d+r}, v{d+r}, v{d+r}"))
                for r in range(4*half, 4*half + 4):
                    L.append(lambda r=r, d=d, p=p: k(f"v_cvt_pk_bf16_f32 v{p+r}, v{d+2*r}, v{d+2*r+1}"))
                def st(mb=mb, half=half, p=p):
                    if half == 0 and (mb or part): k(f"s_add_u32 s{sHST}, s{sHST}, {112*1024}")
                    k.vmem(f"st{part}", f"buffer_store_dwordx4 v[{p+4*half}:{p+4*half+3}], v{vL16}, {srd(sWS)}, s{sHST} offen offset:{1024*half} {hst}")
                L.append(st)
        return L
    k.wait(vm=["xb0", "xb1"], lg="r31")
    k("s_barrier")
    reads_b(0)
    ep = epi1(0)
    w2q = []
    for s in range(14): w2q += [(s, it) for it in dma_w2(s)]
    rdy_done = False
    for ks in range(32):
        if ks % 8 == 7 and ks < 31:
            st = (ks + 1) // 8
            k.wait(vm=[f"xb{2*st}", f"xb{2*st+1}"], lg=f"b{ks}")
            k("s_barrier")
        if ks < 31: reads_b(ks + 1)
        k.wait(lg=f"b{ks}")
        for mb in range(2):
            mfma1(1, ks, mb, ks & 1)
            if ks >= 2:
                for _ in range(4):
                    if ep: ep.pop(0)()
            if not ep and not rdy_done:
                k.vmem("rdy", f"buffer_load_dword v{vB1+12}, v{vRdy}, {srd(sDBG)}, 0 offen sc1"); rdy_done = True
        if w2q and (w2q[0][0] < 12 or ks >= 16): emit_dma(w2q.pop(0)[1])
    while w2q: emit_dma(w2q.pop(0)[1])
    stamp()
    for f in epi1(1): f()
    stamp()
    def spin(label, vgot, vexp, reload):
        k(f"""v_cmp_ne_u32 vcc, v{vgot}, v{vexp}
        s_cbranch_vccz {label}_ok
        s_mov_b32 s{sCNT}, 0
        {label}_loop:
        s_sleep {sleep}
        {reload}
        s_add_u32 s{sCNT}, s{sCNT}, 1
        s_cmp_gt_u32 s{sCNT}, 0x100000
        s_cbranch_scc1 {label}_ok
        s_waitcnt vmcnt(0)
        v_cmp_ne_u32 vcc, v{vgot}, v{vexp}
        s_cbranch_vccnz {label}_loop
        {label}_ok:""")
    k.wait(vm=["st0", "rdy"])
    spin("L_rdy", vB1+12, vE16, f"buffer_load_dword v{vB1+12}, v{vRdy}, {srd(sDBG)}, 0 offen sc1")
    k.vmem("fa", f"buffer_store_dword v{vOne}, v{vFst}, {srd(sWS)}, 0 offen sc1")
    stamp()
    def tr2_setup():
        k(f"""v_add_u32 v{vW1d}, s{sLW2}, v{vTr2}
        v_xor_b32 v{vW1d+1}, 64, v{vW1d}
        v_add_u32 v{vW1d+2}, 49152, v{vW1d}
        v_add_u32 v{vW1d+3}, 49152, v{vW1d+1}
        s_add_u32 s{sT0}, s{sLW1}, {XB}
        v_add_u32 v{vXd}, s{sT0}, v{vTr2}
        v_xor_b32 v{vXd+1}, 64, v{vXd}""")
    def tr2(s):
        i = s % 14
        if i < 6: base, off = vW1d, (i // 3) * 24576 + (i % 3) * 2048
        elif i < 12: base, off = vW1d + 2, (i // 3) * 24576 + (i % 3) * 2048 - 49152
        else: base, off = vXd, (i - 12) * 2048
        for nb in range(2):
            for t in range(2):
                a = aW2 + 8*s + 4*nb + 2*t
                k.lds(f"t{s}", f"ds_read_b64_tr_b16 a[{a}:{a+1}], v{base+nb} offset:{off+1024*t}")
    tr2_setup()
    polla = lambda r: f"buffer_load_dword v{vB1+13+r}, v{vPoll}, {srd(sWS)}, 0 offen offset:{512*r} sc1"
    for s in range(14):
        k.wait(vm=f"w{s}")
        tr2(s)
        if s >= 1:
            k.wait(lg=f"t{s-1}")
            for it in dma_w2(s - 1 + 14): emit_dma(it)
        if s == 9: k.vmem("pa", polla(0))
    k.wait(lg="t13")
    for it in dma_w2(27): emit_dma(it)
    k.wait(vm="st1")
    k.vmem("fb", f"buffer_store_dword v{vOne}, v{vFst}, {srd(sWS)}, 0 offen offset:512 sc1")
    stamp()
    k("s_branch L_join")
    busy_vm = list(k.vm); busy_lg = list(k.lg)
    k.vm = []; k.lg = []
    k("L_spare0:")
    k(f"""s_sub_u32 s{sT0}, s{sIDX}, 28
    s_add_u32 s{sT1}, s{sT0}, s{sWV}
    s_lshl_b32 s{sT2}, s{sWV}, 1
    s_add_u32 s{sT1}, s{sT0}, s{sT2}
    s_cmp_ge_u32 s{sT1}, 2
    s_cbranch_scc1 L_spare1
    s_lshl_b32 s{sT1}, s{sXCD}, 1
    s_add_u32 s{sT1}, s{sT1}, s{sT0}
    s_lshl_b32 s{sT2}, s{sT1}, 10
    s_add_u32 s{sT2}, s{sT2}, {FOFF}
    v_mov_b32 v{vP}, 0
    v_mov_b32 v{vP+1}, 0
    v_mov_b32 v{vP+2}, 0
    v_mov_b32 v{vP+3}, 0
    buffer_store_dwordx4 v[{vP}:{vP+3}], v{vL16}, {srd(sWS)}, s{sT2} offen sc1
    s_lshl_b32 s{sT1}, s{sT1}, 2
    v_mov_b32 v{vT}, s{sT1}
    v_mov_b32 v{vT2}, 0x7ff00000
    v_cmp_eq_u32 vcc, 0, v{vL}
    v_mov_b32 v{vOne}, 1
    s_nop 0
    v_cndmask_b32 v{vT}, v{vT2}, v{vT}, vcc
    s_waitcnt vmcnt(0)
    buffer_store_dword v{vOne}, v{vT}, {srd(sDBG)}, 0 offen sc1
    L_spare1:""")
    common_setup()
    tr2_setup()
    for s in range(14):
        for it in dma_w2(s): emit_dma(it)
    k.vmem("rdy", f"buffer_load_dword v{vB1+12}, v{vRdy}, {srd(sDBG)}, 0 offen sc1")
    for s in range(14):
        k.wait(vm=f"w{s}")
        tr2(s)
        if s >= 1:
            k.wait(lg=f"t{s-1}")
            for it in dma_w2(s - 1 + 14): emit_dma(it)
    k.wait(lg="t13")
    for it in dma_w2(27): emit_dma(it)
    k.wait_all()
    spin("L_rdy2", vB1+12, vE16, f"buffer_load_dword v{vB1+12}, v{vRdy}, {srd(sDBG)}, 0 offen sc1")
    k(polla(0)); k.wait_all()
    if padto: k("s_mov_b64 s[72:73], s[70:71]")
    if stamps:
        for i in range(1, nstamp[0]): k(f"s_mov_b64 s[{72+2*i}:{73+2*i}], s[72:73]")
    k.vm = busy_vm; k.lg = busy_lg
    k("L_join:")
    k.n += 20
    k.wait(vm="pa")
    spin("L_pa", vB1+13, vE14, polla(0))
    stamp()
    hq = [(r, s) for r in range(2) for s in range(28)]
    hidx = [0]
    def hbuf(i): return vF + 4*(i % 32)
    def hload():
        i = hidx[0]; r, s = hq[i]; hidx[0] += 1
        if s % 4 == 0 and i > 0:
            d = 4096 if s else (2*112*1024 - 24*1024)
            k(f"s_add_u32 s{sHLD}, s{sHLD}, {d}")
        b = hbuf(i)
        k.vmem(f"h{i}", f"buffer_load_dwordx4 v[{b}:{b+3}], v{vL16}, {srd(sWS)}, s{sHLD} offen offset:{1024*(s%4)} {hld}")
    for i in range(14):
        if i < DH: hload()
        k.wait(vm=f"w{14+i}")
        tr2(14 + i)
    while hidx[0] < DH: hload()
    k(f"s_lshl_b32 s{sT1}, s{sT}, 7\nv_and_b32 v{vT}, 0x70, v{vOut}")
    k.vmem("b2", f"buffer_load_dwordx4 v[{vB1}:{vB1+3}], v{vT}, {srd(sB2)}, s{sT1} offen")
    def mfma2(r, s):
        b = hbuf(28*r + s)
        for nb in range(2):
            d = vAcc + 32*r + 16*nb
            c = "0" if s == 0 else f"v[{d}:{d+15}]"
            a = aW2 + 8*s + 4*nb
            k(f"v_mfma_f32_32x32x16_bf16 v[{d}:{d+15}], a[{a}:{a+3}], v[{b}:{b+3}], {c}")
    def red_write(r):
        L = []
        for nb in range(2):
            for q in range(4):
                d = vAcc + 32*r + 16*nb + 4*q
                L.append(lambda d=d, nb=nb, q=q: k.lds(f"rw{r}", f"ds_write_b128 v{vRW+q}, v[{d}:{d+3}] offset:{1024*(4*nb+q)}"))
        return L
    def red_read(r):
        L = []
        for src in range(4):
            for hi in range(2):
                d = vAcc + 32*r + 8*src + 4*hi
                L.append(lambda d=d, src=src, hi=hi: k.lds(f"rr{r}_{src}", f"ds_read_b128 v[{d}:{d+3}], v{vRR} offset:{8192*src+512*hi}"))
        return L
    def red_fin(r):
        L = []; d = vAcc + 32*r
        L.append(lambda: k.wait(lg=f"rr{r}_1"))
        for e in range(8): L.append(lambda e=e: k(f"v_add_f32 v{d+e}, v{d+e}, v{d+8+e}"))
        L.append(lambda: k.wait(lg=f"rr{r}_3"))
        for e in range(8): L.append(lambda e=e: k(f"v_add_f32 v{d+16+e}, v{d+16+e}, v{d+24+e}"))
        for e in range(8): L.append(lambda e=e: k(f"v_add_f32 v{d+e}, v{d+e}, v{vB1+4+e}"))
        for e in range(8): L.append(lambda e=e: k(f"v_add_f32 v{d+e}, v{d+e}, v{d+16+e}"))
        for e in range(4): L.append(lambda e=e: k(f"v_cvt_pk_bf16_f32 v{vP+4*r+e}, v{d+2*e}, v{d+2*e+1}"))
        def st():
            if r: k(f"s_add_u32 s{sOUTO}, s{sOUTO}, 65536")
            k.vmem(f"o{r}", f"buffer_store_dwordx4 v[{vP+4*r}:{vP+4*r+3}], v{vOut}, {srd(sOUT)}, s{sOUTO} offen {ost}")
        L.append(st)
        return L
    k.wait(lg="t27")
    pb_at = 28 - DH - 6 if 28 - DH - 6 > 0 else 0
    for s in range(28):
        k.wait(vm=f"h{s}")
        mfma2(0, s)
        if s == pb_at: k.vmem("pb", polla(1))
        if hidx[0] == 28:
            k.wait(vm="pb")
            spin("L_pb", vB1+14, vE14, polla(1))
            stamp()
        hload()
    stamp()
    fill = []
    for e in range(4):
        fill.append(lambda e=e: k(f"v_lshlrev_b32 v{vB1+4+2*e}, 16, v{vB1+e}\nv_and_b32 v{vB1+5+2*e}, 0xffff0000, v{vB1+e}"))
    rw = red_write(0); rr = red_read(0); rf = red_fin(0)
    for s in range(28):
        k.wait(vm=f"h{28+s}")
        mfma2(1, s)
        if hidx[0] < 56: hload()
        if s < 4: fill.pop(0)()
        if 4 <= s < 12: rw.pop(0)()
        if s == 13:
            k.wait(lg="rw0"); k("s_barrier")
        if 14 <= s < 18: rr.pop(0)(); rr.pop(0)()
        if s == 18:
            for r_ in (vRW, vRW+1, vRW+2, vRW+3, vRR): k(f"v_subrev_u32 v{r_}, {XB+16384}, v{r_}")
        if s >= 19:
            for _ in range(5):
                if rf: rf.pop(0)()
    while rf: rf.pop(0)()
    stamp()
    for f in red_write(1): f()
    k.wait(lg="rw1"); k("s_barrier")
    for f in red_read(1): f()
    for f in red_fin(1): f()
    if padto:
        k.wait_all(); stamp()
        k(f"s_add_u32 s74, s70, {padto}")
        if padev: k("s_sub_u32 s75, s72, s70\ns_add_u32 s74, s74, s75")
        k("L_pad:\ns_memrealtime s[76:77]\ns_waitcnt lgkmcnt(0)\ns_sub_u32 s75, s76, s74\ns_cmp_lt_i32 s75, 0\ns_cbranch_scc1 L_pad")
    if stamps:
        k.wait_all(); stamp()
        n = nstamp[0]
        k(f"""s_memrealtime s[{72+2*n}:{73+2*n}]
        s_waitcnt lgkmcnt(0)
        s_lshl_b32 s{sT0}, s2, 2
        s_add_u32 s{sT0}, s{sT0}, s{sWV}
        s_lshl_b32 s{sT0}, s{sT0}, 7
        s_add_u32 s{sT0}, s{sT0}, {STAMP}
        s_mov_b64 exec, 1
        v_mov_b32 v{vT}, 0""")
        for i in range(n + 2):
            k(f"v_mov_b32 v2, s{70+2*i}\nv_mov_b32 v3, s{71+2*i}\nbuffer_store_dwordx2 v[2:3], v{vT}, {srd(sWS)}, s{sT0} offen offset:{8*i}\ns_nop 1")
        assert 72 + 2*n + 1 < 102
        k.nst = n + 2
    k(f"{end}:\ns_endpgm")
    return k

if __name__ == "__main__":
    import argparse
    ap = argparse.ArgumentParser()
    ap.add_argument("-o", default="k.s"); ap.add_argument("--stamps", action="store_true")
    ap.add_argument("--opt", default="")
    a = ap.parse_args()
    kw = eval(f"dict({a.opt})")
    k = gen(stamps=a.stamps, **kw)
    open(a.o, "w").write(make_file([k], [(k.name, 256, 256, 163840)], single=True))
    build(a.o)
    print("ok", a.o, "instrs", len(k.lines), "nst", getattr(k, "nst", 0))
```

```python
import sys, re
from asmlib import *

STAMP = 200 << 20
HOFF = 0
FOFF = 8 << 20

class E(K):
    def __init__(s, name, **kw):
        super().__init__(name, **kw)
        s.vm = []
        s.lg = []
        s.n = 0
        s.mfma_w = {}
        s.valu_w = {}
        s.st_r = {}
        s.m0_w = -10
        s.sg_valu = {}
    @staticmethod
    def regs(op):
        op = op.strip()
        m = re.fullmatch(r"([vas])\[(\d+):(\d+)\]", op)
        if m: return [(m.group(1), i) for i in range(int(m.group(2)), int(m.group(3)) + 1)]
        m = re.fullmatch(r"([vas])(\d+)", op)
        if m: return [(m.group(1), int(m.group(2)))]
        return []
    def pad(s, need):
        while need > 0:
            d = min(need, 16)
            s.lines.append(f"    s_nop {d-1}")
            s.n += d; need -= d
    def i(s, line):
        line = line.strip()
        if not line or line.startswith(";"):
            if line: s.lines.append("    " + line)
            return
        if line.endswith(":"):
            s.lines.append(line); return
        code = line.split(";")[0].strip()
        mn, _, rest = code.partition(" ")
        ops = [o.strip() for o in re.split(r",(?![^\[]*\])", rest)] if rest else []
        ops0 = [o.split(" ")[0] for o in ops]
        allr = [r for o in ops0 for r in s.regs(o)]
        need = 0
        is_mfma = mn.startswith("v_mfma")
        is_valu = mn.startswith("v_") and not is_mfma
        is_mem = mn.startswith(("buffer_", "global_", "ds_"))
        if is_mfma:
            d = s.regs(ops0[0]); srcs = [r for o in ops0[1:] for r in s.regs(o)]
            for r in srcs:
                if r in s.valu_w: need = max(need, 2 - (s.n - s.valu_w[r] - 1))
            ab = s.regs(ops0[1]) + s.regs(ops0[2])
            for r in ab:
                if r in s.mfma_w: need = max(need, 12 - (s.n - s.mfma_w[r] - 1))
            c = s.regs(ops0[3])
            if c != d:
                for r in c + d:
                    if r in s.mfma_w: need = max(need, 12 - (s.n - s.mfma_w[r] - 1))
        elif is_valu or is_mem:
            for r in allr:
                if r in s.mfma_w: need = max(need, 12 - (s.n - s.mfma_w[r] - 1))
        if is_valu:
            dst = s.regs(ops0[0]) if ops0 else []
            for r in dst:
                if r in s.st_r: need = max(need, 2 - (s.n - s.st_r[r] - 1))
            if mn.startswith(("v_readfirstlane", "v_readlane")):
                for r in s.regs(ops0[1]):
                    if r in s.valu_w: need = max(need, 1 - (s.n - s.valu_w[r] - 1))
            if mn.startswith("v_permlane"):
                for r in allr:
                    if r in s.valu_w: need = max(need, 2 - (s.n - s.valu_w[r] - 1))
            for r in allr:
                if r[0] == "s" and r in s.sg_valu: need = max(need, 2 - (s.n - s.sg_valu[r] - 1))
        if is_mem:
            for r in allr:
                if r[0] == "s" and r in s.sg_valu: need = max(need, 5 - (s.n - s.sg_valu[r] - 1))
            if code.endswith(" lds"): need = max(need, 1 - (s.n - s.m0_w - 1))
        s.pad(need)
        s.lines.append("    " + line)
        if is_mfma:
            for r in s.regs(ops0[0]): s.mfma_w[r] = s.n
        if is_valu:
            for r in (s.regs(ops0[0]) if ops0 else []):
                if r[0] == "s": s.sg_valu[r] = s.n
                else: s.valu_w[r] = s.n
            if mn.startswith("v_permlane"):
                for r in s.regs(ops0[1]): s.valu_w[r] = s.n
        if mn.startswith("buffer_store_dwordx"):
            for r in s.regs(ops0[0]): s.st_r[r] = s.n
        if mn.startswith("s_") and ops0 and ops0[0] == "m0": s.m0_w = s.n
        if mn == "s_nop": s.n += int(ops0[0]) + 1
        else: s.n += 1
    def __call__(s, text=""):
        for l in text.split("\n"): s.i(l)
    def vmem(s, tag, line):
        s.i(line); s.vm.append(tag); assert len(s.vm) <= 63, "vmcnt overflow"
    def lds(s, tag, line):
        s.i(line); s.lg.append(tag)
    def _wait(s, q, tags):
        last = max((i for i, t in enumerate(q) if t in tags), default=-1)
        return last
    def wait(s, vm=(), lg=(), force=False):
        if isinstance(vm, str): vm = (vm,)
        if isinstance(lg, str): lg = (lg,)
        parts = []
        l = s._wait(s.vm, set(vm))
        if l >= 0:
            n = len(s.vm) - 1 - l; s.vm = s.vm[l + 1:]; parts.append(f"vmcnt({n})")
        l = s._wait(s.lg, set(lg))
        if l >= 0:
            n = len(s.lg) - 1 - l
            n = min(n, 15); s.lg = s.lg[len(s.lg) - n:] if n else []; parts.append(f"lgkmcnt({n})")
        if parts: s.i("s_waitcnt " + " ".join(parts))
    def wait_all(s, vm=True, lg=True):
        p = []
        if vm: p.append("vmcnt(0)"); s.vm = []
        if lg: p.append("lgkmcnt(0)"); s.lg = []
        s.i("s_waitcnt " + " ".join(p))

def gen(name=MAIN, stamps=False, rot=0, hst="sc1", hld="sc1", ost="", DH=12, sleep=1, padto=0, padev=None, padref=None):
    k = E(name, vgpr=512, accum=256, sgpr=102)
    nstamp = [0]
    evn = [1]
    def stamp():
        if padto:
            if evn[0] == padev: k("s_memrealtime s[72:73]"); k.wait_all(vm=False)
            evn[0] += 1
        if not stamps: return
        i = nstamp[0]; nstamp[0] += 1
        k(f"s_memtime s[{72+2*i}:{73+2*i}]"); k.wait_all(vm=False)
    sX, sW1, sW2, sWS, sOUT, sDBG, sB1, sB2 = 20, 24, 28, 32, 36, 40, 44, 48
    srd = lambda b: f"s[{b}:{b+3}]"
    sWV, sIDX, sXCD, sGP, sJ, sGC, sQ, sT = 3, 4, 5, 6, 7, 8, 9, 10
    sT0, sT1, sT2 = 11, 12, 13
    sLW1, sLX, sLW2 = 14, 15, 16
    sHST, sHLD, sOW2 = 17, 18, 19
    sCW1 = 52
    sCX = 60
    sOUTO, sCNT = 68, 69
    vL, vL16 = 0, 1
    vW1d = 2
    vXd = 6
    vTr1 = 8
    vXr = 9
    vW2d = 13
    vT = 15
    vB1 = 16
    vP = 32
    vTr2 = 48
    vFst = 50
    vPoll = 51
    vE14, vE16 = 52, 53
    vRdy = 54
    vRW = 55
    vRR = 59
    vOut = 60
    vOne = 61
    vL4 = 62
    vT2 = 63
    vAcc = 64
    vF = 128
    aW2 = 0
    aX = 224
    XB = 98304
    end = f"L_end_{name}"

    k(f"s_cmp_ge_u32 s2, 256\ns_cbranch_scc1 {end}")
    if stamps or padto: k("s_memrealtime s[70:71]")
    for b, off in ((sX, 0), (sW1, 8), (sB1, 16), (sW2, 24), (sB2, 32), (sOUT, 40), (sDBG, 48), (sWS, 56)):
        k(f"s_load_dwordx2 s[{b}:{b+1}], s[0:1], {off}")
    if stamps: k("s_memtime s[72:73]"); nstamp[0] = 1
    for b, sz in ((sX, 2048*1024), (sW1, 512*3584), (sB1, 3584), (sW2, 1792*1024), (sB2, 1024), (sOUT, 2048*1024), (sDBG, 64), (sWS, 0x10000000 if stamps else (FOFF + 16384))):
        k(f"s_mov_b32 s{b+2}, {sz}\ns_mov_b32 s{b+3}, 0x20000")
    k(f"""
    v_lshrrev_b32 v{vT}, 6, v0
    v_and_b32 v{vL}, 63, v0
    v_readfirstlane_b32 s{sWV}, v{vT}
    s_and_b32 s{sXCD}, s2, 7
    s_lshr_b32 s{sIDX}, s2, 3
    s_lshr_b32 s{sT0}, s{sXCD}, 1
    s_lshl_b32 s{sT0}, s{sT0}, 2
    s_and_b32 s{sGP}, s{sIDX}, 3
    s_add_u32 s{sGP}, s{sGP}, s{sT0}
    s_and_b32 s{sT0}, s{sXCD}, 1
    s_mul_i32 s{sT0}, s{sT0}, 7
    s_lshr_b32 s{sJ}, s{sIDX}, 2
    s_add_u32 s{sJ}, s{sJ}, s{sT0}
    s_and_b32 s{sT}, s{sIDX}, 7
    s_bfe_u32 s{sQ}, s{sIDX}, 0x10003
    s_lshr_b32 s{sGC}, s{sIDX}, 4
    s_lshl_b32 s{sT0}, s{sXCD}, 1
    s_add_u32 s{sGC}, s{sGC}, s{sT0}
    v_lshlrev_b32 v{vL16}, 4, v{vL}
    v_lshrrev_b32 v{vL4}, 4, v{vL}          ; l>>4
    """)
    k(f"""
    s_lshl_b32 s{sT0}, s{sWV}, 4
    v_add_u32 v{vT}, s{sT0}, v{vL4}          ; row = 16w + (l>>4)
    v_mul_u32_u24 v{vT}, 3584, v{vT}
    v_lshlrev_b32 v{vT2}, 2, v{vL4}
    v_xor_b32 v{vT2}, v{vT2}, v{vL}
    v_and_b32 v{vT2}, 15, v{vT2}
    v_lshl_add_u32 v{vW1d}, v{vT2}, 4, v{vT}
    v_add_u32 v{vW1d+1}, {4*3584-1024}, v{vW1d}
    v_add_u32 v{vW1d+2}, {2*(4*3584-1024)}, v{vW1d}
    v_add_u32 v{vW1d+3}, {3*(4*3584-1024)}, v{vW1d}
    v_lshrrev_b32 v{vT}, 3, v{vL}
    v_add_u32 v{vT}, s{sT0}, v{vT}
    v_lshlrev_b32 v{vT}, 10, v{vT}
    v_xor_b32 v{vT2}, v{vL4}, v{vL}
    v_and_b32 v{vT2}, 7, v{vT2}
    v_lshl_add_u32 v{vXd}, v{vT2}, 4, v{vT}
    v_xor_b32 v{vXd+1}, 64, v{vXd}
    v_add_u32 v{vXd+1}, {8*1024-1024}, v{vXd+1}
    s_lshl_b32 s{sT1}, s{sJ}, 8
    s_lshl_b32 s{sT2}, s{sGP}, 17
    s_lshl_b32 s{sLW1}, s{sWV}, 12
    s_lshl_b32 s{sLX}, s{sWV}, 11
    """)
    if rot:
        k(f"""s_lshr_b32 s{sT0}, s{sIDX}, 2
        s_xor_b32 s{sT0}, s{sT0}, s{sIDX}
        s_and_b32 s{sT0}, s{sT0}, 1
        s_lshl_b32 s{sT0}, s{sT0}, 2""")
        for c in range(8):
            k(f"""s_xor_b32 s{sCNT}, s{sT0}, {c}
            s_mul_i32 s{sCW1+c}, s{sCNT}, {64*3584}
            s_add_u32 s{sCW1+c}, s{sCW1+c}, s{sT1}
            s_lshl_b32 s{sCX+c}, s{sCNT}, 7
            s_add_u32 s{sCX+c}, s{sCX+c}, s{sT2}""")
    else:
        for c in range(8):
            k(f"s_add_u32 s{sCW1+c}, s{sT1}, {c*64*3584}\ns_add_u32 s{sCX+c}, s{sT2}, {c*128}")
    k(f"""
    s_lshl_b32 s{sT0}, s{sWV}, 6
    s_add_u32 s{sT0}, s{sT0}, s{sT1}
    v_lshrrev_b32 v{vT}, 5, v{vL}
    v_lshlrev_b32 v{vT}, 3, v{vT}
    v_add_u32 v{vP}, s{sT0}, v{vT}
    s_cmp_ge_u32 s{sIDX}, 28
    s_waitcnt lgkmcnt(0)
    s_cbranch_scc1 L_spare0
    """)
    def dma_chunk(c):
        slot = (c & 3) * 24576
        it = []
        for ii in range(4):
            pre = f"s_add_u32 m0, s{sLW1}, {slot}" if ii == 0 else None
            it.append((pre, f"a{c}", f"buffer_load_dwordx4 v{vW1d+ii}, {srd(sW1)}, s{sCW1+c} offen offset:{1024*ii} lds"))
        for ii in range(2):
            pre = f"s_add_u32 m0, s{sLX}, {slot+16384}" if ii == 0 else None
            it.append((pre, f"a{c}", f"buffer_load_dwordx4 v{vXd+ii}, {srd(sX)}, s{sCX+c} offen offset:{1024*ii} lds"))
        return it
    def dma_xb(c):
        it = []
        for ii in range(2):
            pre = f"s_add_u32 m0, s{sLX}, {XB+c*8192}" if ii == 0 else None
            it.append((pre, f"xb{c}", f"buffer_load_dwordx4 v{vW1d+ii}, {srd(sX)}, s{sCX+c} offen offset:{1024*ii} lds"))
        return it
    def w2slot(s):
        i = s % 14
        return (i // 3) * 24576 + (i % 3) * 2048 if i < 12 else None, i
    def w2_lds(s):
        i = s % 14
        if i < 12: return (sLW2, (i // 3) * 24576 + (i % 3) * 2048)
        return (sLW1, XB + (i - 12) * 2048)
    def dma_w2(s):
        b, c = w2_lds(s)
        return [(f"s_add_u32 m0, s{b}, {c}", f"w{s}", f"buffer_load_dwordx4 v{vW2d}, {srd(sW2)}, s{sOW2} offen lds"),
                (None, f"w{s}", f"buffer_load_dwordx4 v{vW2d+1}, {srd(sW2)}, s{sOW2} offen offset:1024 lds", f"s_add_u32 s{sOW2}, s{sOW2}, 16384")]
    def emit_dma(it):
        if it[0]: k(it[0])
        k.vmem(it[1], it[2])
        if len(it) > 3: k(it[3])
    for it in dma_chunk(0): emit_dma(it)
    for q in range(4):
        k.vmem("b1", f"buffer_load_dwordx2 v[{vP+2+2*q}:{vP+3+2*q}], v{vP}, {srd(sB1)}, 0 offen offset:{16*q}")
    for c in (1, 2):
        for it in dma_chunk(c): emit_dma(it)

    def common_setup():
        k(f"""
        v_lshrrev_b32 v{vT}, 3, v{vL}
        v_lshlrev_b32 v{vT}, 10, v{vT}
        v_and_b32 v{vT2}, 1, v{vL4}
        v_lshlrev_b32 v{vT2}, 2, v{vT2}
        v_xor_b32 v{vT2}, v{vT2}, v{vL}
        v_and_b32 v{vT2}, 7, v{vT2}
        v_lshl_add_u32 v{vW2d}, v{vT2}, 4, v{vT}
        v_add_u32 v{vW2d+1}, 7168, v{vW2d}
        s_mul_i32 s{sOW2}, s{sWV}, {448*1024}
        s_lshl_b32 s{sT0}, s{sT}, 7
        s_add_u32 s{sOW2}, s{sOW2}, s{sT0}
        s_mul_i32 s{sLW2}, s{sWV}, 6144
        v_lshrrev_b32 v{vT}, 5, v{vL}
        v_lshlrev_b32 v{vT}, 2, v{vT}
        v_bfe_u32 v{vT2}, v{vL}, 2, 2
        v_add_u32 v{vT}, v{vT}, v{vT2}
        v_lshlrev_b32 v{vT}, 7, v{vT}
        v_bfe_u32 v{vT2}, v{vL}, 3, 1
        v_lshl_or_b32 v{vT}, v{vT2}, 6, v{vT}
        v_bfe_u32 v{vT2}, v{vL}, 4, 1
        v_lshl_or_b32 v{vT}, v{vT2}, 5, v{vT}
        v_and_b32 v{vT2}, 3, v{vL}
        v_lshl_or_b32 v{vTr2}, v{vT2}, 3, v{vT}
        s_lshl_b32 s{sT0}, s{sGC}, 2
        s_add_u32 s{sT0}, s{sT0}, s{sQ}
        s_mul_i32 s{sHLD}, s{sT0}, {112*1024}
        s_mul_i32 s{sT1}, s{sWV}, {28*1024}
        s_add_u32 s{sHLD}, s{sHLD}, s{sT1}
        s_lshl_b32 s{sOUTO}, s{sT0}, 15
        s_lshl_b32 s{sT1}, s{sWV}, 13
        s_add_u32 s{sOUTO}, s{sOUTO}, s{sT1}
        s_lshl_b32 s{sT1}, s{sT}, 7
        s_add_u32 s{sOUTO}, s{sOUTO}, s{sT1}
        v_lshrrev_b32 v{vT}, 3, v{vL}
        v_and_b32 v{vT2}, 7, v{vL}
        v_lshlrev_b32 v{vOut}, 4, v{vT2}
        v_lshl_or_b32 v{vOut}, v{vT}, 10, v{vOut}
        s_lshl_b32 s{sT1}, s{sWV}, 3
        v_add_u32 v{vT}, s{sT1}, v{vT}
        v_and_b32 v{vRR}, 3, v{vL}
        v_lshlrev_b32 v{vRR}, 2, v{vRR}
        v_xor_b32 v{vT}, v{vT}, v{vRR}
        v_lshlrev_b32 v{vT}, 4, v{vT}
        v_lshl_or_b32 v{vRR}, v{vT2}, 10, v{vT}
        v_add_u32 v{vRR}, {XB+16384}, v{vRR}
        s_lshl_b32 s{sT1}, s{sWV}, 13
        s_add_u32 s{sT1}, s{sT1}, {XB+16384}
        v_add_u32 v{vRW}, s{sT1}, v{vL16}
        v_xor_b32 v{vRW+1}, 64, v{vRW}
        v_xor_b32 v{vRW+2}, 128, v{vRW}
        v_xor_b32 v{vRW+3}, 192, v{vRW}
        s_lshl_b32 s{sT0}, s{sGC}, 3
        s_add_u32 s{sT0}, s{sT0}, s{sWV}
        s_lshl_b32 s{sT0}, s{sT0}, 7
        s_add_u32 s{sT0}, s{sT0}, {FOFF}
        v_lshlrev_b32 v{vRdy}, 2, v{vL}
        v_add_u32 v{vPoll}, s{sT0}, v{vRdy}
        v_mov_b32 v{vOne}, 1
        v_mov_b32 v{vT}, 0x7ff00000
        v_cmp_gt_u32 vcc, 14, v{vL}
        s_nop 1
        v_cndmask_b32 v{vPoll}, v{vT}, v{vPoll}, vcc
        v_cndmask_b32 v{vE14}, 0, v{vOne}, vcc
        v_cmp_gt_u32 vcc, 16, v{vL}
        s_nop 1
        v_cndmask_b32 v{vE16}, 0, v{vOne}, vcc
        """)
    k(f"""
    v_lshrrev_b32 v{vT}, 5, v{vL}
    v_lshlrev_b32 v{vT}, 3, v{vT}
    v_bfe_u32 v{vT2}, v{vL}, 2, 2
    v_add_u32 v{vT}, v{vT}, v{vT2}
    v_lshlrev_b32 v{vT}, 8, v{vT}
    v_xor_b32 v{vT2}, s{sWV}, v{vT2}
    v_lshl_or_b32 v{vT}, v{vT2}, 6, v{vT}
    v_bfe_u32 v{vT2}, v{vL}, 4, 1
    v_lshl_or_b32 v{vT}, v{vT2}, 5, v{vT}
    v_and_b32 v{vT2}, 3, v{vL}
    v_lshl_or_b32 v{vTr1}, v{vT2}, 3, v{vT}
    v_and_b32 v{vT}, 31, v{vL}
    v_lshlrev_b32 v{vT}, 7, v{vT}
    v_lshrrev_b32 v{vT2}, 5, v{vL}
    v_bfe_u32 v{vXr}, v{vL}, 1, 3
    v_xor_b32 v{vT2}, v{vT2}, v{vXr}
    v_lshl_or_b32 v{vXr}, v{vT2}, 4, v{vT}
    v_xor_b32 v{vXr+1}, 32, v{vXr}
    v_xor_b32 v{vXr+2}, 64, v{vXr}
    v_xor_b32 v{vXr+3}, 96, v{vXr}
    s_mul_i32 s{sHST}, s{sGP}, {4*112*1024}
    s_lshl_b32 s{sT0}, s{sJ}, 13
    s_add_u32 s{sHST}, s{sHST}, s{sT0}
    s_lshl_b32 s{sT0}, s{sWV}, 11
    s_add_u32 s{sHST}, s{sHST}, s{sT0}
    ; flag store: fb = 4j+w; w' = fb/14; slot = fb%14 ; FOFF + (gp*8 + w')*128 + slot*4  (+512 for round b)
    s_lshl_b32 s{sT0}, s{sJ}, 2
    s_add_u32 s{sT0}, s{sT0}, s{sWV}
    s_mul_i32 s{sT1}, s{sT0}, 0x124a
    s_lshr_b32 s{sT1}, s{sT1}, 16
    s_mul_i32 s{sT2}, s{sT1}, 14
    s_sub_u32 s{sT0}, s{sT0}, s{sT2}
    s_lshl_b32 s{sT0}, s{sT0}, 2
    s_lshl_b32 s{sT2}, s{sGP}, 3
    s_add_u32 s{sT1}, s{sT1}, s{sT2}
    s_lshl_b32 s{sT1}, s{sT1}, 7
    s_add_u32 s{sT0}, s{sT0}, s{sT1}
    s_add_u32 s{sT0}, s{sT0}, {FOFF}
    v_mov_b32 v{vFst}, 0x7ff00000
    v_mov_b32 v{vT}, s{sT0}
    v_cmp_eq_u32 vcc, 0, v{vL}
    s_nop 1
    v_cndmask_b32 v{vFst}, v{vFst}, v{vT}, vcc
    """)
    common_setup()
    k.wait(vm="b1")
    for q in range(4):
        for h in range(2):
            src = vP + 2 + 2*q + h
            k(f"v_lshlrev_b32 v{vB1+4*q+2*h}, 16, v{src}\nv_and_b32 v{vB1+4*q+2*h+1}, 0xffff0000, v{src}")

    hi_base = [False]
    def rebase(want):
        if want != hi_base[0]:
            op = "v_add_u32" if want else "v_subrev_u32"
            for r in [vTr1] + [vXr + i for i in range(4)]:
                k(f"{op} v{r}, 49152, v{r}")
            hi_base[0] = want
    def reads_a(c, s):
        slot = (c & 3) * 24576 - (49152 if hi_base[0] else 0)
        ks = 4*c + s
        for t in range(2):
            k.lds(f"r{ks}", f"ds_read_b64_tr_b16 v[{vF+4*ks+2*t}:{vF+4*ks+2*t+1}], v{vTr1} offset:{slot+4096*s+1024*t}")
        for mb in range(2):
            a = aX + 8*(ks & 1) + 4*mb
            k.lds(f"r{ks}", f"ds_read_b128 a[{a}:{a+3}], v{vXr+s} offset:{slot+16384+4096*mb}")
    def mfma1(part, ks, mb, buf):
        d = vAcc + 32*part + 16*mb
        c = f"v[{vB1}:{vB1+15}]" if ks == 0 else f"v[{d}:{d+15}]"
        a = aX + 8*buf + 4*mb
        k(f"v_mfma_f32_32x32x16_bf16 v[{d}:{d+15}], v[{vF+4*ks}:{vF+4*ks+3}], a[{a}:{a+3}], {c}")
    dq = []
    for c in range(3, 8): dq += dma_chunk(c)
    xbq = []
    for c in range(8): xbq += dma_xb(c)
    stamp()
    for c in range(8):
        k.wait(vm=f"a{c}", lg=[f"r{4*c-1}"])
        k("s_barrier")
        if c == 0: stamp()
        rebase((c & 3) >= 2)
        if c == 5:
            k(f"v_add_u32 v{vW1d}, 65536, v{vXd}\nv_add_u32 v{vW1d+1}, 65536, v{vXd+1}")
        reads_a(c, 0)
        q = (dq if c < 5 else xbq)
        for s in range(4):
            if s < 3: reads_a(c, s + 1)
            n = (2, 2, 1, 1)[s]
            for _ in range(n):
                if q: emit_dma(q.pop(0))
            k.wait(lg=f"r{4*c+s}")
            mfma1(0, 4*c+s, 0, s & 1); mfma1(0, 4*c+s, 1, s & 1)
    assert not dq and not xbq
    stamp()
    for i in range(4):
        k(f"v_add_u32 v{vXr+i}, {XB-49152}, v{vXr+i}")
    def reads_b(ks):
        c, s = ks >> 2, ks & 3
        for mb in range(2):
            a = aX + 8*(ks & 1) + 4*mb
            k.lds(f"b{ks}", f"ds_read_b128 a[{a}:{a+3}], v{vXr+s} offset:{c*8192+4096*mb}")
    def epi1(part):
        L = []
        for mb in range(2):
            d = vAcc + 32*part + 16*mb; p = vP + 8*mb
            for half in range(2):
                for r in range(8*half, 8*half + 8):
                    L.append(lambda r=r, d=d: k(f"v_max_f32 v{d+r}, 0, v{d+r}"))
                for r in range(8*half, 8*half + 8):
                    L.append(lambda r=r, d=d: k(f"v_mul_f32 v{d+r}, v{d+r}, v{d+r}"))
                for r in range(4*half, 4*half + 4):
                    L.append(lambda r=r, d=d, p=p: k(f"v_cvt_pk_bf16_f32 v{p+r}, v{d+2*r}, v{d+2*r+1}"))
                def st(mb=mb, half=half, p=p):
                    if half == 0 and (mb or part): k(f"s_add_u32 s{sHST}, s{sHST}, {112*1024}")
                    k.vmem(f"st{part}", f"buffer_store_dwordx4 v[{p+4*half}:{p+4*half+3}], v{vL16}, {srd(sWS)}, s{sHST} offen offset:{1024*half} {hst}")
                L.append(st)
        return L
    k.wait(vm=["xb0", "xb1"], lg="r31")
    k("s_barrier")
    reads_b(0)
    ep = epi1(0)
    w2q = []
    for s in range(14): w2q += [(s, it) for it in dma_w2(s)]
    rdy_done = False
    for ks in range(32):
        if ks % 8 == 7 and ks < 31:
            st = (ks + 1) // 8
            k.wait(vm=[f"xb{2*st}", f"xb{2*st+1}"], lg=f"b{ks}")
            k("s_barrier")
        if ks < 31: reads_b(ks + 1)
        k.wait(lg=f"b{ks}")
        for mb in range(2):
            mfma1(1, ks, mb, ks & 1)
            if ks >= 2:
                for _ in range(4):
                    if ep: ep.pop(0)()
            if not ep and not rdy_done:
                k.vmem("rdy", f"buffer_load_dword v{vB1+12}, v{vRdy}, {srd(sDBG)}, 0 offen sc1"); rdy_done = True
        if w2q and (w2q[0][0] < 12 or ks >= 16): emit_dma(w2q.pop(0)[1])
    while w2q: emit_dma(w2q.pop(0)[1])
    stamp()
    for f in epi1(1): f()
    stamp()
    def spin(label, vgot, vexp, reload):
        k(f"""v_cmp_ne_u32 vcc, v{vgot}, v{vexp}
        s_cbranch_vccz {label}_ok
        s_mov_b32 s{sCNT}, 0
        {label}_loop:
        s_sleep {sleep}
        {reload}
        s_add_u32 s{sCNT}, s{sCNT}, 1
        s_cmp_gt_u32 s{sCNT}, 0x100000
        s_cbranch_scc1 {label}_ok
        s_waitcnt vmcnt(0)
        v_cmp_ne_u32 vcc, v{vgot}, v{vexp}
        s_cbranch_vccnz {label}_loop
        {label}_ok:""")
    k.wait(vm=["st0", "rdy"])
    spin("L_rdy", vB1+12, vE16, f"buffer_load_dword v{vB1+12}, v{vRdy}, {srd(sDBG)}, 0 offen sc1")
    k.vmem("fa", f"buffer_store_dword v{vOne}, v{vFst}, {srd(sWS)}, 0 offen sc1")
    stamp()
    def tr2_setup():
        k(f"""v_add_u32 v{vW1d}, s{sLW2}, v{vTr2}
        v_xor_b32 v{vW1d+1}, 64, v{vW1d}
        v_add_u32 v{vW1d+2}, 49152, v{vW1d}
        v_add_u32 v{vW1d+3}, 49152, v{vW1d+1}
        s_add_u32 s{sT0}, s{sLW1}, {XB}
        v_add_u32 v{vXd}, s{sT0}, v{vTr2}
        v_xor_b32 v{vXd+1}, 64, v{vXd}""")
    def tr2(s):
        i = s % 14
        if i < 6: base, off = vW1d, (i // 3) * 24576 + (i % 3) * 2048
        elif i < 12: base, off = vW1d + 2, (i // 3) * 24576 + (i % 3) * 2048 - 49152
        else: base, off = vXd, (i - 12) * 2048
        for nb in range(2):
            for t in range(2):
                a = aW2 + 8*s + 4*nb + 2*t
                k.lds(f"t{s}", f"ds_read_b64_tr_b16 a[{a}:{a+1}], v{base+nb} offset:{off+1024*t}")
    tr2_setup()
    polla = lambda r: f"buffer_load_dword v{vB1+13+r}, v{vPoll}, {srd(sWS)}, 0 offen offset:{512*r} sc1"
    for s in range(14):
        k.wait(vm=f"w{s}")
        tr2(s)
        if s >= 1:
            k.wait(lg=f"t{s-1}")
            for it in dma_w2(s - 1 + 14): emit_dma(it)
        if s == 9: k.vmem("pa", polla(0))
    k.wait(lg="t13")
    for it in dma_w2(27): emit_dma(it)
    k.wait(vm="st1")
    k.vmem("fb", f"buffer_store_dword v{vOne}, v{vFst}, {srd(sWS)}, 0 offen offset:512 sc1")
    stamp()
    k("s_branch L_join")
    busy_vm = list(k.vm); busy_lg = list(k.lg)
    k.vm = []; k.lg = []
    k("L_spare0:")
    k(f"""s_sub_u32 s{sT0}, s{sIDX}, 28
    s_add_u32 s{sT1}, s{sT0}, s{sWV}
    s_lshl_b32 s{sT2}, s{sWV}, 1
    s_add_u32 s{sT1}, s{sT0}, s{sT2}
    s_cmp_ge_u32 s{sT1}, 2
    s_cbranch_scc1 L_spare1
    s_lshl_b32 s{sT1}, s{sXCD}, 1
    s_add_u32 s{sT1}, s{sT1}, s{sT0}
    s_lshl_b32 s{sT2}, s{sT1}, 10
    s_add_u32 s{sT2}, s{sT2}, {FOFF}
    v_mov_b32 v{vP}, 0
    v_mov_b32 v{vP+1}, 0
    v_mov_b32 v{vP+2}, 0
    v_mov_b32 v{vP+3}, 0
    buffer_store_dwordx4 v[{vP}:{vP+3}], v{vL16}, {srd(sWS)}, s{sT2} offen sc1
    s_lshl_b32 s{sT1}, s{sT1}, 2
    v_mov_b32 v{vT}, s{sT1}
    v_mov_b32 v{vT2}, 0x7ff00000
    v_cmp_eq_u32 vcc, 0, v{vL}
    v_mov_b32 v{vOne}, 1
    s_nop 0
    v_cndmask_b32 v{vT}, v{vT2}, v{vT}, vcc
    s_waitcnt vmcnt(0)
    buffer_store_dword v{vOne}, v{vT}, {srd(sDBG)}, 0 offen sc1
    L_spare1:""")
    common_setup()
    tr2_setup()
    for s in range(14):
        for it in dma_w2(s): emit_dma(it)
    k.vmem("rdy", f"buffer_load_dword v{vB1+12}, v{vRdy}, {srd(sDBG)}, 0 offen sc1")
    for s in range(14):
        k.wait(vm=f"w{s}")
        tr2(s)
        if s >= 1:
            k.wait(lg=f"t{s-1}")
            for it in dma_w2(s - 1 + 14): emit_dma(it)
    k.wait(lg="t13")
    for it in dma_w2(27): emit_dma(it)
    k.wait_all()
    spin("L_rdy2", vB1+12, vE16, f"buffer_load_dword v{vB1+12}, v{vRdy}, {srd(sDBG)}, 0 offen sc1")
    k(polla(0)); k.wait_all()
    if padto: k("s_mov_b64 s[72:73], s[70:71]")
    if stamps:
        for i in range(1, nstamp[0]): k(f"s_mov_b64 s[{72+2*i}:{73+2*i}], s[72:73]")
    k.vm = busy_vm; k.lg = busy_lg
    k("L_join:")
    k.n += 20
    k.wait(vm="pa")
    spin("L_pa", vB1+13, vE14, polla(0))
    stamp()
    hq = [(r, s) for r in range(2) for s in range(28)]
    hidx = [0]
    def hbuf(i): return vF + 4*(i % 32)
    def hload():
        i = hidx[0]; r, s = hq[i]; hidx[0] += 1
        if s % 4 == 0 and i > 0:
            d = 4096 if s else (2*112*1024 - 24*1024)
            k(f"s_add_u32 s{sHLD}, s{sHLD}, {d}")
        b = hbuf(i)
        k.vmem(f"h{i}", f"buffer_load_dwordx4 v[{b}:{b+3}], v{vL16}, {srd(sWS)}, s{sHLD} offen offset:{1024*(s%4)} {hld}")
    for i in range(14):
        if i < DH: hload()
        k.wait(vm=f"w{14+i}")
        tr2(14 + i)
    while hidx[0] < DH: hload()
    k(f"s_lshl_b32 s{sT1}, s{sT}, 7\nv_and_b32 v{vT}, 0x70, v{vOut}")
    k.vmem("b2", f"buffer_load_dwordx4 v[{vB1}:{vB1+3}], v{vT}, {srd(sB2)}, s{sT1} offen")
    def mfma2(r, s):
        b = hbuf(28*r + s)
        for nb in range(2):
            d = vAcc + 32*r + 16*nb
            c = "0" if s == 0 else f"v[{d}:{d+15}]"
            a = aW2 + 8*s + 4*nb
            k(f"v_mfma_f32_32x32x16_bf16 v[{d}:{d+15}], a[{a}:{a+3}], v[{b}:{b+3}], {c}")
    def red_write(r):
        L = []
        for nb in range(2):
            for q in range(4):
                d = vAcc + 32*r + 16*nb + 4*q
                L.append(lambda d=d, nb=nb, q=q: k.lds(f"rw{r}", f"ds_write_b128 v{vRW+q}, v[{d}:{d+3}] offset:{1024*(4*nb+q)}"))
        return L
    def red_read(r):
        L = []
        for src in range(4):
            for hi in range(2):
                d = vAcc + 32*r + 8*src + 4*hi
                L.append(lambda d=d, src=src, hi=hi: k.lds(f"rr{r}_{src}", f"ds_read_b128 v[{d}:{d+3}], v{vRR} offset:{8192*src+512*hi}"))
        return L
    def red_fin(r):
        L = []; d = vAcc + 32*r
        L.append(lambda: k.wait(lg=f"rr{r}_1"))
        for e in range(8): L.append(lambda e=e: k(f"v_add_f32 v{d+e}, v{d+e}, v{d+8+e}"))
        L.append(lambda: k.wait(lg=f"rr{r}_3"))
        for e in range(8): L.append(lambda e=e: k(f"v_add_f32 v{d+16+e}, v{d+16+e}, v{d+24+e}"))
        for e in range(8): L.append(lambda e=e: k(f"v_add_f32 v{d+e}, v{d+e}, v{vB1+4+e}"))
        for e in range(8): L.append(lambda e=e: k(f"v_add_f32 v{d+e}, v{d+e}, v{d+16+e}"))
        for e in range(4): L.append(lambda e=e: k(f"v_cvt_pk_bf16_f32 v{vP+4*r+e}, v{d+2*e}, v{d+2*e+1}"))
        def st():
            if r: k(f"s_add_u32 s{sOUTO}, s{sOUTO}, 65536")
            k.vmem(f"o{r}", f"buffer_store_dwordx4 v[{vP+4*r}:{vP+4*r+3}], v{vOut}, {srd(sOUT)}, s{sOUTO} offen {ost}")
        L.append(st)
        return L
    k.wait(lg="t27")
    pb_at = 28 - DH - 6 if 28 - DH - 6 > 0 else 0
    for s in range(28):
        k.wait(vm=f"h{s}")
        mfma2(0, s)
        if s == pb_at: k.vmem("pb", polla(1))
        if hidx[0] == 28:
            k.wait(vm="pb")
            spin("L_pb", vB1+14, vE14, polla(1))
            stamp()
        hload()
    stamp()
    fill = []
    for e in range(4):
        fill.append(lambda e=e: k(f"v_lshlrev_b32 v{vB1+4+2*e}, 16, v{vB1+e}\nv_and_b32 v{vB1+5+2*e}, 0xffff0000, v{vB1+e}"))
    rw = red_write(0); rr = red_read(0); rf = red_fin(0)
    for s in range(28):
        k.wait(vm=f"h{28+s}")
        mfma2(1, s)
        if hidx[0] < 56: hload()
        if s < 4: fill.pop(0)()
        if 4 <= s < 12: rw.pop(0)()
        if s == 13:
            k.wait(lg="rw0"); k("s_barrier")
        if 14 <= s < 18: rr.pop(0)(); rr.pop(0)()
        if s == 18:
            for r_ in (vRW, vRW+1, vRW+2, vRW+3, vRR): k(f"v_subrev_u32 v{r_}, {XB+16384}, v{r_}")
        if s >= 19:
            for _ in range(5):
                if rf: rf.pop(0)()
    while rf: rf.pop(0)()
    stamp()
    for f in red_write(1): f()
    k.wait(lg="rw1"); k("s_barrier")
    for f in red_read(1): f()
    for f in red_fin(1): f()
    if padto:
        k.wait_all(); stamp()
        if padref is not None:
            k(f"""s_mov_b64 exec, 1
            v_mov_b32 v2, 128
            v_mov_b32 v3, s70
            v_or_b32 v3, 1, v3
            s_cmp_eq_u32 s2, {padref}
            s_cbranch_scc0 L_padr
            global_store_dword v2, v3, s[{sDBG}:{sDBG+1}] sc1
            L_padr:
            global_load_dword v3, v2, s[{sDBG}:{sDBG+1}] sc1
            s_waitcnt vmcnt(0)
            v_readfirstlane_b32 s70, v3
            s_cmp_eq_u32 s70, 0
            s_cbranch_scc1 L_padr""")
        k(f"s_add_u32 s74, s70, {padto}")
        if padev: k("s_sub_u32 s75, s72, s70\ns_add_u32 s74, s74, s75")
        k("L_pad:\ns_memrealtime s[76:77]\ns_waitcnt lgkmcnt(0)\ns_sub_u32 s75, s76, s74\ns_cmp_lt_i32 s75, 0\ns_cbranch_scc1 L_pad")
    if stamps:
        k.wait_all(); stamp()
        n = nstamp[0]
        k(f"""s_memrealtime s[{72+2*n}:{73+2*n}]
        s_waitcnt lgkmcnt(0)
        s_lshl_b32 s{sT0}, s2, 2
        s_add_u32 s{sT0}, s{sT0}, s{sWV}
        s_lshl_b32 s{sT0}, s{sT0}, 7
        s_add_u32 s{sT0}, s{sT0}, {STAMP}
        s_mov_b64 exec, 1
        v_mov_b32 v{vT}, 0""")
        for i in range(n + 2):
            k(f"v_mov_b32 v2, s{70+2*i}\nv_mov_b32 v3, s{71+2*i}\nbuffer_store_dwordx2 v[2:3], v{vT}, {srd(sWS)}, s{sT0} offen offset:{8*i}\ns_nop 1")
        assert 72 + 2*n + 1 < 102
        k.nst = n + 2
    k(f"{end}:\ns_endpgm")
    return k

if __name__ == "__main__":
    import argparse
    ap = argparse.ArgumentParser()
    ap.add_argument("-o", default="k.s"); ap.add_argument("--stamps", action="store_true")
    ap.add_argument("--opt", default="")
    a = ap.parse_args()
    kw = eval(f"dict({a.opt})")
    k = gen(stamps=a.stamps, **kw)
    open(a.o, "w").write(make_file([k], [(k.name, 256, 256, 163840)], single=True))
    build(a.o)
    print("ok", a.o, "instrs", len(k.lines), "nst", getattr(k, "nst", 0))
```
